```python
import torch

def _softmax(x, axis=-1):
    return torch.softmax(x, dim=axis)
def _gelu(x):
    return torch.nn.functional.gelu(x, approximate="tanh")
def _silu(x):
    return torch.nn.functional.silu(x)
def _sigmoid(x):
    return torch.sigmoid(x)
def _layernorm(x, axis=-1, eps=1e-5):
    m = x.mean(dim=axis, keepdim=True)
    v = x.var(dim=axis, keepdim=True, unbiased=False)
    return (x - m) / torch.sqrt(v + eps)
def _scatter_add(tgt, idx, src, axis=0):
    return tgt.clone().index_add_(axis, idx, src)
def _segment_sum(src, seg, n):
    out = torch.zeros((n,) + src.shape[1:], dtype=src.dtype)
    return out.index_add_(0, seg, src)
def _pad(x, pw):
    flat = tuple(v for pair in reversed(pw) for v in pair)
    return torch.nn.functional.pad(x, flat)

kernel_name = 'concat_heads__ssm_conv_s4__ssm_conv_h3__prompt'

def setup_inputs():

    _w = (lambda a: (lambda t: t.to(torch.bfloat16) if t.is_floating_point() else t)(torch.as_tensor(a)))
    def _A_setup():
        B, L, D, N = 1, 2048, 576, 128
        A_re = -(lambda _x: torch.exp(torch.as_tensor(_x)))((lambda *s: torch.randn(*s, dtype=torch.bfloat16) * 6.4)(D, N))
        A_im = torch.pi * (lambda *s: torch.randn(*s, dtype=torch.bfloat16) * 0.05)(D, N)
        B_re = (lambda *s: torch.randn(*s, dtype=torch.bfloat16) * 0.1)(D, N)
        B_im = (lambda *s: torch.randn(*s, dtype=torch.bfloat16) * 0.1)(D, N)
        C_re = (lambda *s: torch.randn(*s, dtype=torch.bfloat16) * 0.1)(D, N)
        C_im = (lambda *s: torch.randn(*s, dtype=torch.bfloat16) * 0.1)(D, N)
        log_dt = (lambda *s: torch.randn(*s, dtype=torch.bfloat16) * 0.05)(D) * 0.5 - 4.0
        Dskip = (lambda *s: torch.randn(*s, dtype=torch.bfloat16) * 0.05)(D)
        return {
            "u": _w((lambda *s: torch.randn(*s, dtype=torch.bfloat16) * 0.05)(B, L, D)),
            "A_re": _w(A_re),
            "A_im": _w(A_im),
            "B_re": _w(B_re),
            "B_im": _w(B_im),
            "C_re": _w(C_re),
            "C_im": _w(C_im),
            "log_dt": _w(log_dt),
            "Dskip": _w(Dskip),
        }
    _A_in = _A_setup()

    def _B_setup():
        B, S, D = 1, 2048, 576
        ks = 4
        return {
            "q": _w((lambda *s: torch.randn(*s, dtype=torch.bfloat16) * 0.05)(B, S, D)),
            "k": _w((lambda *s: torch.randn(*s, dtype=torch.bfloat16) * 0.4)(B, S, D)),
            "v": _w((lambda *s: torch.randn(*s, dtype=torch.bfloat16) * 0.4)(B, S, D)),
            "shift_k": _w((lambda *s: torch.randn(*s, dtype=torch.bfloat16) * 0.4)(D, ks) * 0.5),
            "ssm_k": _w((lambda *s: torch.randn(*s, dtype=torch.bfloat16) * 0.4)(D, S) * (1.0 / S ** 0.5)),
            "ssm_D": _w((lambda *s: torch.randn(*s, dtype=torch.bfloat16) * 0.4)(D)),
        }
    _B_in = _B_setup()

    return {
        "A_u": _A_in["u"],
        "A_A_re": _A_in["A_re"],
        "A_A_im": _A_in["A_im"],
        "A_B_re": _A_in["B_re"],
        "A_B_im": _A_in["B_im"],
        "A_C_re": _A_in["C_re"],
        "A_C_im": _A_in["C_im"],
        "A_log_dt": _A_in["log_dt"],
        "A_Dskip": _A_in["Dskip"],
        "B_q": _B_in["q"],
        "B_k": _B_in["k"],
        "B_v": _B_in["v"],
        "B_shift_k": _B_in["shift_k"],
        "B_ssm_k": _B_in["ssm_k"],
        "B_ssm_D": _B_in["ssm_D"],
    }

def reference(A_u, A_A_re, A_A_im, A_B_re, A_B_im, A_C_re, A_C_im, A_log_dt, A_Dskip, B_q, B_k, B_v, B_shift_k, B_ssm_k, B_ssm_D):
    def _A_ref(u, A_re, A_im, B_re, B_im, C_re, C_im, log_dt, Dskip):
        Bsz, L, D = u.shape
        dt = torch.exp(log_dt)[:, None]
        A = A_re + 1j * A_im
        Bc = B_re + 1j * B_im
        Cc = C_re + 1j * C_im
        logdA = dt * A
        dB = dt * Bc
        l = (lambda x, dt: x.to(dt))(torch.arange(L), A_re.dtype)
        P = torch.exp(logdA[:, :, None] * l[None, None, :])
        K = torch.einsum("dn,dnl,dn->dl", Cc, P, dB).real
        L2 = 2 * L
        Kp = _pad(K, ((0, 0), (0, L)))
        up = (lambda x, *d: x.permute(*d))(u, 0, 2, 1)
        up = _pad(up, ((0, 0), (0, 0), (0, L)))
        Kf = (lambda x, axes=(-2,-1): torch.fft.rfft2(x.float(), dim=axes))(Kp[:, None, :], axes=(-2, -1))
        Uf = (lambda x, axes=(-2,-1): torch.fft.rfft2(x.float(), dim=axes))(up[:, :, None, :], axes=(-2, -1))
        Yf = Uf * Kf[None, :, :, :]
        y = (lambda x, s, axes=(-2,-1): torch.fft.irfft2(x, s=s, dim=axes).to(torch.bfloat16))(Yf, (1, L2), axes=(-2, -1))[:, :, 0, :L]
        y = (lambda x, *d: x.permute(*d))(y, 0, 2, 1) + u * Dskip[None, None, :]
        return y

    def _B_ref(q, k, v, shift_k, ssm_k, ssm_D):
        B, S, D = q.shape
        ks = shift_k.shape[-1]
        k_pad = _pad(k, ((0, 0), (ks - 1, 0), (0, 0)))
        k_shift = torch.zeros_like(k)
        for t in range(ks):
            k_shift = k_shift + k_pad[:, t:t + S, :] * shift_k[:, ks - 1 - t][None, None, :]
        kv = k_shift * v
        L = 2 * S
        kv_pad = _pad(kv, ((0, 0), (0, S), (0, 0)))
        kf_pad = _pad(ssm_k, ((0, 0), (0, S)))
        kv_f = (lambda x, axes=(-2,-1): torch.fft.rfft2(x.float(), dim=axes))(kv_pad[:, None, :, :], axes=(1, 2))
        kf_f = (lambda x, axes=(-2,-1): torch.fft.rfft2(x.float(), dim=axes))(kf_pad[:, None, :], axes=(1, 2))
        kf_f = (lambda x, *d: x.permute(*d))(kf_f, 1, 2, 0)
        y_f = kv_f * kf_f[None, :, :, :]
        y = (lambda x, s, axes=(-2,-1): torch.fft.irfft2(x, s=s, dim=axes).to(torch.bfloat16))(y_f, (1, L), axes=(1, 2))[:, 0, :S, :]
        y = y + kv * ssm_D[None, None, :]
        return q * y

    a = _A_ref(A_u, A_A_re, A_A_im, A_B_re, A_B_im, A_C_re, A_C_im, A_log_dt, A_Dskip)
    b = _B_ref(B_q, B_k, B_v, B_shift_k, B_ssm_k, B_ssm_D)
    return torch.concatenate([a, b], axis=-1)
```

```python
import re


class VR:
    _n = 0

    def __init__(self, name, size=1, align=None, fixed=None):
        self.name = name
        self.size = size
        self.align = align or (1 if size == 1 else 2)
        self.phys = fixed
        self.fixed = fixed is not None
        VR._n += 1
        self.id = VR._n

    def __getitem__(self, i):
        if isinstance(i, slice):
            a = i.start or 0
            b = self.size if i.stop is None else i.stop
            return Sub(self, a, b - a)
        return Sub(self, i, 1)

    def regs(self):
        return [(self, k) for k in range(self.size)]

    def txt(self):
        return Sub(self, 0, self.size).txt()


class Sub:
    def __init__(self, vr, off, size):
        assert 0 <= off and off + size <= vr.size, (vr.name, off, size)
        self.vr, self.off, self.size = vr, off, size

    def __getitem__(self, i):
        if isinstance(i, slice):
            a = i.start or 0
            b = self.size if i.stop is None else i.stop
            return Sub(self.vr, self.off + a, b - a)
        return Sub(self.vr, self.off + i, 1)

    def regs(self):
        return [(self.vr, self.off + k) for k in range(self.size)]

    def txt(self):
        p = self.vr.phys + self.off
        if self.size == 1:
            return f"v{p}"
        assert p % 2 == 0, (self.vr.name, p)
        return f"v[{p}:{p + self.size - 1}]"


def isv(x):
    return isinstance(x, (VR, Sub))


_SRE = re.compile(r"^-?s(\d+)$|^s\[(\d+):(\d+)\]$")


def sregs(x):
    if not isinstance(x, str):
        return []
    if x in ("m0", "vcc", "exec"):
        return [x]
    m = _SRE.match(x)
    if not m:
        return []
    if m.group(1) is not None:
        return [f"s{m.group(1)}"]
    return [f"s{k}" for k in range(int(m.group(2)), int(m.group(3)) + 1)]


class Neg:
    def __init__(self, v):
        self.v = v


class Ins:
    def __init__(self, op, ops, kind, dst=(), src=(), mods="", **kw):
        self.op, self.ops, self.kind, self.mods = op, ops, kind, mods
        self.wv, self.rv, self.ws, self.rs = [], [], [], []
        for d in dst:
            if isv(d):
                self.wv += d.regs()
            else:
                self.ws += sregs(d)
        for s in src:
            if isinstance(s, Neg):
                s = s.v
            if isv(s):
                self.rv += s.regs()
            else:
                self.rs += sregs(s)
        self.dppsrc = kw.get("dppsrc", [])
        self.srcc = kw.get("srcc", [])
        self.passes = kw.get("passes", 0)
        self.tag = kw.get("tag")
        self.wide = kw.get("wide", [])
        self.arg = kw.get("arg")

    def text(self):
        def f(o):
            if isinstance(o, Neg):
                return "-" + f(o.v)
            if isv(o):
                return o.txt()
            if isinstance(o, int):
                return str(o) if -16 <= o <= 64 else hex(o & 0xFFFFFFFF)
            return str(o)

        t = self.op
        if self.ops:
            t += " " + ", ".join(f(o) for o in self.ops)
        if self.mods:
            t += " " + self.mods
        return t


TRANS = {"v_exp_f32", "v_log_f32", "v_rcp_f32", "v_rsq_f32", "v_sqrt_f32", "v_sin_f32", "v_cos_f32"}
RMW = {"v_fmac_f32"}


def valu(op, d, *s, mods=""):
    src = list(s) + ([d] if op in RMW else [])
    return Ins(op, [d, *s], "trans" if op in TRANS else "valu", [d], src, mods)


def dpp(op, d, s0, s1, ctrl, partial=True):
    ops = [d, s0] + ([s1] if s1 is not None else [])
    src = [s0] + ([s1] if s1 is not None else [])
    i = Ins(op + "_dpp", ops, "valu", [d], src, ctrl, dppsrc=s0.regs())
    return i


def salu(op, d, *s):
    return Ins(op, [d, *s] if d is not None else list(s), "salu", [d] if d is not None else [], s)


def smem(op, d, base, off):
    return Ins(op, [d, base, off], "smem", [d], [base] + ([off] if isinstance(off, str) else []))


def mfma16(d, a, b, c):
    srcc = c.regs() if isv(c) else []
    return Ins("v_mfma_f32_16x16x32_bf16", [d, a, b, c], "mfma", [d], [a, b, c], srcc=srcc, passes=4)


def dsr(op, d, addr, off=0):
    assert 0 <= off < 65536, off
    return Ins(op, [d, addr], "dsr", [d], [addr], f"offset:{off}" if off else "")


def dsw(op, addr, data, off=0):
    assert 0 <= off < 65536, off
    return Ins(op, [addr, data], "dsw", [], [addr, data], f"offset:{off}" if off else "")


def bufld(op, d, voff, srd, soff=0, off=0, tag=None, fl=""):
    assert 0 <= off < 4096
    m = "offen" + (f" offset:{off}" if off else "") + (" " + fl if fl else "")
    return Ins(op, [d, voff, srd, soff], "vml", [d], [voff, srd, soff], m, tag=tag)


def dma(op, voff, srd, soff=0, off=0, tag=None, fl=""):
    assert 0 <= off < 4096
    m = "offen" + (f" offset:{off}" if off else "") + (" " + fl if fl else "") + " lds"
    return Ins(op, [voff, srd, soff], "dma", [], [voff, srd, soff, "m0"], m, tag=tag)


def bufst(op, data, voff, srd, soff=0, off=0, fl=""):
    assert 0 <= off < 4096
    m = "offen" + (f" offset:{off}" if off else "") + (" " + fl if fl else "")
    wide = data.regs() if data.size >= 3 else []
    return Ins(op, [data, voff, srd, soff], "vms", [], [data, voff, srd, soff], m, wide=wide)


def waitvm(tag):
    return Ins("waitvm", [], "waitvm", arg=tag)


def waitds():
    return Ins("waitds", [], "waitds")


def barrier():
    return Ins("s_barrier", [], "bar")


def raw(text, kind="other"):
    return Ins(text, [], kind)


def weave(back, fill, start=0, end=None):
    end = len(back) if end is None else end
    n = end - start
    out = list(back[:start])
    k = 0
    for i in range(n):
        out.append(back[start + i])
        upto = (len(fill) * (i + 1) + n - 1) // n
        while k < upto:
            f = fill[k]
            out += f if isinstance(f, list) else [f]
            k += 1
    out += back[end:]
    assert k == len(fill)
    return out


def allocate(ins, nregs, reserved=()):
    first, last, vrs = {}, {}, {}
    for i, x in enumerate(ins):
        for vr, _ in x.wv + x.rv:
            vrs[vr.id] = vr
            first.setdefault(vr.id, i)
            last[vr.id] = i
    busy = [-1] * nregs
    for r in reserved:
        busy[r] = 1 << 30
    for vr in vrs.values():
        if vr.fixed:
            for k in range(vr.size):
                busy[vr.phys + k] = max(busy[vr.phys + k], last[vr.id])
    hw = 0
    for vid in sorted(first, key=lambda v: first[v]):
        vr = vrs[vid]
        if vr.fixed:
            hw = max(hw, vr.phys + vr.size)
            continue
        f = first[vid]
        best = None
        for p in range(0, nregs - vr.size + 1, vr.align):
            if all(busy[p + k] < f for k in range(vr.size)):
                age = f - max(busy[p + k] for k in range(vr.size))
                if age > 12:
                    best = p
                    break
                if best is None:
                    best = p
        if best is None:
            live = [v.name for v in vrs.values() if v.phys is not None and last[v.id] >= f and first[v.id] <= f]
            raise RuntimeError(f"out of VGPRs for {vr.name} at {f}: live={live}")
        vr.phys = best
        for k in range(vr.size):
            busy[best + k] = last[vid]
        hw = max(hw, best + vr.size)
    return hw


def finalize(ins, stats=None):
    out = []
    P = lambda regs: [vr.phys + k for vr, k in regs]
    pos = 0
    lds_q = []
    smem_pend = set()
    vm_q = []
    w_valu, w_trans, w_mfma, r_srcc, w_sv, w_m0, wide = {}, {}, {}, {}, {}, [-99], {}
    nn = 0

    def emit(t, states=1):
        nonlocal pos
        out.append(t)
        pos += states

    def wait(vm=None, lg=None):
        nonlocal lds_q, vm_q, smem_pend
        parts = []
        if vm is not None:
            vm = min(vm, 62)
            parts.append(f"vmcnt({vm})")
            vm_q = vm_q[len(vm_q) - vm:] if vm else []
        if lg is not None:
            lg = min(lg, 14)
            parts.append(f"lgkmcnt({lg})")
            lds_q = lds_q[len(lds_q) - lg:] if lg else []
            if lg == 0:
                smem_pend = set()
        emit("s_waitcnt " + " ".join(parts))

    for x in ins:
        if x.kind == "waitvm":
            idx = [i for i, (_, t) in enumerate(vm_q) if t == x.arg]
            if idx:
                wait(vm=len(vm_q) - 1 - idx[-1])
            continue
        if x.kind == "waitds":
            if lds_q or smem_pend:
                wait(lg=0)
            continue
        rv, wv = P(x.rv), P(x.wv)
        touch = set(rv) | set(wv)
        vm = lg = None
        for i, d in enumerate(lds_q):
            if d & touch:
                lg = len(lds_q) - 1 - i
        if smem_pend & (set(x.rs) | set(x.ws)):
            lg = 0
        if lg is not None and smem_pend:
            lg = 0
        for i, (d, _) in enumerate(vm_q):
            if d & touch:
                vm = len(vm_q) - 1 - i
        if vm is not None or lg is not None:
            wait(vm, lg)
        need = 0

        def req(p, n):
            nonlocal need
            need = max(need, p + n + 1 - pos)

        isvalu = x.kind in ("valu", "trans")
        if x.kind == "mfma":
            srcc = set(P(x.srcc))
            ab = set(rv) - srcc
            for r in rv:
                if r in w_valu:
                    req(w_valu[r], 2)
            for r in ab:
                if r in w_mfma:
                    req(w_mfma[r][0], 8 if w_mfma[r][1] == 4 else 12)
            for r in srcc | set(wv):
                if r in w_mfma:
                    p, ps, dset = w_mfma[r]
                    if not (dset == srcc and ps == x.passes):
                        req(p, (6 if ps == 4 else 10))
        else:
            for r in touch:
                if r in w_mfma:
                    req(w_mfma[r][0], 8 if w_mfma[r][1] == 4 else 12)
            if isvalu or x.kind in ("dsr", "vml"):
                for r in wv:
                    if r in r_srcc:
                        req(r_srcc[r][0], 3 if r_srcc[r][1] == 4 else 7)
                    if r in wide:
                        req(wide[r], 2)
            if isvalu:
                for r in P(x.dppsrc):
                    if r in w_valu:
                        req(w_valu[r], 2)
                if x.kind == "valu":
                    for r in rv:
                        if r in w_trans:
                            req(w_trans[r], 1)
                if x.op.startswith("v_read"):
                    for r in rv:
                        if r in w_valu:
                            req(w_valu[r], 1)
                for s in x.rs:
                    if s in w_sv:
                        req(w_sv[s], 2)
            if x.kind in ("vml", "vms", "dma"):
                for s in x.rs:
                    if s in w_sv:
                        req(w_sv[s], 5)
            if x.kind in ("salu", "smem"):
                for s in x.rs:
                    if s in w_sv:
                        req(w_sv[s], 2)
            if x.kind == "dma":
                req(w_m0[0], 1)
        if need > 0:
            nn += need
            while need > 0:
                k = min(need, 16)
                emit(f"s_nop {k - 1}", k)
                need -= k
        me = pos
        emit(x.text())
        if isvalu:
            for r in wv:
                w_valu[r] = me
                w_trans.pop(r, None)
                w_mfma.pop(r, None)
                if x.kind == "trans":
                    w_trans[r] = me
            for s in x.ws:
                w_sv[s] = me
        elif x.kind == "mfma":
            for r in wv:
                w_mfma[r] = (me, x.passes, set(wv))
                w_valu.pop(r, None)
            for r in P(x.srcc):
                r_srcc[r] = (me, x.passes)
        elif x.kind == "salu":
            for s in x.ws:
                w_sv.pop(s, None)
                if s == "m0":
                    w_m0[0] = me
        elif x.kind == "smem":
            smem_pend |= set(x.ws)
        elif x.kind in ("dsr", "dsw"):
            lds_q.append(set(wv))
            for r in wv:
                w_valu.pop(r, None)
                w_mfma.pop(r, None)
        elif x.kind in ("vml", "vms", "dma"):
            vm_q.append((set(wv), x.tag))
            for r in wv:
                w_valu.pop(r, None)
                w_mfma.pop(r, None)
            for r in P(x.wide):
                wide[r] = me
    if stats is not None:
        stats["nops"] = nn
        stats["n"] = len(out)
    return out
```

```python
import sys
from asmlib import *

NAME = "concat_heads__ssm_conv_s4__ssm_conv_h3__prompt"
ROW = 1152
OROW = 2304
NB, NA = 72, 144
KSTR, USTR = 4288, 4256
KPAD, UPAD = 96, 160
SHR = "wave_shr:1 row_mask:0xf bank_mask:0xf"
SHR0 = "wave_shr:1 row_mask:0xf bank_mask:0xf bound_ctrl:0"
ROR = "wave_ror:1 row_mask:0x1 bank_mask:0x1"
v0 = VR("v0", fixed=0)


def lane_fields(o):
    lane, g, r, c = VR("lane"), VR("g"), VR("r"), VR("c")
    o += [valu("v_and_b32", lane, 63, v0), valu("v_bfe_u32", g, v0, 4, 2),
          valu("v_bfe_u32", r, v0, 2, 2), valu("v_and_b32", c, 3, v0)]
    return lane, g, r, c


def fg_addr(o, g, r, c, s_k, s_u):
    vF, vG, t = VR("vF"), VR("vG"), VR("t")
    o += [valu("v_lshlrev_b32", t, 3, g), valu("v_add_u32", t, t, r),
          valu("v_lshlrev_b32", vF, 2, c), valu("v_sub_u32", vF, vF, t),
          valu("v_lshlrev_b32", vF, 3, vF), valu("v_add_u32", vF, KPAD - 32 + 152, vF),
          valu("v_add_u32", vF, s_k, vF),
          valu("v_add_u32", vG, t, c), valu("v_lshlrev_b32", vG, 3, vG),
          valu("v_add_u32", vG, UPAD - 152, vG), valu("v_add_u32", vG, s_u, vG)]
    return vF, vG


class Conv:
    def __init__(s, vF, vG):
        s.vF, s.vG = vF, vG
        s.F, s.G, s.acc, s.started, s.prev, s.y = {}, {}, {}, set(), None, {}

    def loadF(s, l):
        s.F[l] = f = VR(f"F{l}", 4)
        return [dsr("ds_read_b64_tr_b16", f[0:2], s.vF, 256 * l + 32), dsr("ds_read_b64_tr_b16", f[2:4], s.vF, 256 * l)]

    def loadG(s, i):
        s.G[i] = g = VR(f"G{i}", 4)
        return [dsr("ds_read_b64_tr_b16", g[0:2], s.vG, 128 * i), dsr("ds_read_b64_tr_b16", g[2:4], s.vG, 128 * i + 32)]

    def mm(s, j, i):
        assert (j - i) % 2 == 0 and i <= j
        if j not in s.acc:
            s.acc[j] = VR(f"acc{j}", 4)
            return mfma16(s.acc[j], s.F[(j - i) // 2], s.G[i], 0)
        return mfma16(s.acc[j], s.F[(j - i) // 2], s.G[i], s.acc[j])

    def horner(s, j, final=True):
        a = s.acc[j]
        S2, S1, y = VR(f"S2_{j}"), VR(f"S1_{j}"), VR(f"y{j}")
        o = []
        if s.prev is None:
            o += [dpp("v_add_f32", S2, a[3], a[2], SHR0), dpp("v_add_f32", S1, S2, a[1], SHR0)]
            if final:
                o += [dpp("v_add_f32", y, S1, a[0], SHR0)]
        else:
            p3, p2, p1 = s.prev
            o += [dpp("v_add_f32", S2, p3, a[2], ROR), dpp("v_add_f32", S1, p2, a[1], ROR),
                  dpp("v_add_f32", S2, a[3], a[2], SHR), dpp("v_add_f32", y, p1, a[0], ROR),
                  dpp("v_add_f32", S1, S2, a[1], SHR), dpp("v_add_f32", y, S1, a[0], SHR)]
        s.prev = (a[3], S2, S1)
        s.y[j] = y
        return o


B_KT, B_U, B_Q, B_RAW = 0, 8 * KSTR, 8 * KSTR + 8 * USTR, 8 * KSTR + 8 * USTR + 32768
RAWS = 2112
B_END = B_RAW + 16 * RAWS


def gen_B():
    o = []
    sK, sk, sv, sq, so, ssh = "s[8:11]", "s[12:15]", "s[16:19]", "s[20:23]", "s[24:27]", "s[28:31]"
    o += [smem("s_load_dwordx2", "s[8:9]", "s[0:1]", 104), smem("s_load_dwordx2", "s[12:13]", "s[0:1]", 80),
          smem("s_load_dwordx2", "s[16:17]", "s[0:1]", 88), smem("s_load_dwordx2", "s[28:29]", "s[0:1]", 96),
          smem("s_load_dwordx2", "s[20:21]", "s[0:1]", 72), smem("s_load_dwordx2", "s[32:33]", "s[0:1]", 112),
          smem("s_load_dwordx2", "s[24:25]", "s[0:1]", 120)]
    for b, n in ((8, 2359296), (12, 2359296), (16, 2359296), (20, 2359296), (24, 4718592), (28, 4608)):
        o += [salu("s_mov_b32", f"s{b + 2}", n), salu("s_mov_b32", f"s{b + 3}", 0x20000)]
    o += [salu("s_and_b32", "s34", "s2", 7), salu("s_mul_i32", "s34", "s34", 9), salu("s_lshr_b32", "s35", "s2", 3),
          salu("s_add_u32", "s34", "s34", "s35"), salu("s_lshl_b32", "s35", "s34", 4),
          salu("s_lshl_b32", "s36", "s34", 3), salu("s_add_u32", "s36", "s36", "s3"),
          salu("s_lshl_b32", "s37", "s36", 12),
          salu("s_mul_i32", "s38", "s3", KSTR),
          salu("s_mul_i32", "s39", "s3", USTR), salu("s_add_u32", "s39", "s39", B_U),
          salu("s_mul_i32", "s40", "s3", RAWS), salu("s_add_u32", "s40", "s40", B_RAW),
          salu("s_mul_i32", "s41", "s3", 64 * ROW)]
    lane, g, r, c = lane_fields(o)
    l16, vRaw, vHalo, vQ, vSh, t = VR("l16"), VR("vRaw"), VR("vHalo"), VR("vQ"), VR("vSh"), VR("t")
    o += [valu("v_lshlrev_b32", l16, 4, lane)]
    o += [valu("v_and_b32", vRaw, 0x23, lane), valu("v_lshl_add_u32", vRaw, r, 3, vRaw),
          valu("v_and_b32", t, 1, g), valu("v_lshl_add_u32", vRaw, t, 2, vRaw),
          valu("v_mul_u32_u24", vRaw, ROW, vRaw), valu("v_add_u32", vRaw, "s35", vRaw),
          valu("v_mul_u32_u24", vQ, ROW, lane), valu("v_add_u32", vQ, "s35", vQ),
          valu("v_add_u32", vHalo, "s41", vQ), valu("v_subrev_u32", vHalo, 4 * ROW, vHalo),
          valu("v_lshl_add_u32", vSh, t, 2, c), valu("v_lshlrev_b32", vSh, 3, vSh),
          salu("s_lshl_b32", "s42", "s34", 6)]
    o += [salu("s_add_u32", "m0", "s38", KPAD)]
    for m in range(4):
        o.append(dma("buffer_load_dwordx4", l16, sK, "s37", 1024 * m, tag="K"))
    o += [salu("s_lshl_b32", "s43", "s36", 1), salu("s_and_b32", "s44", "s43", -4),
          smem("s_load_dword", "s45", "s[32:33]", "s44"), smem("s_load_dword", "s46", "s[8:9]", "s37")]

    def raw_dma(step):
        x = []
        slot = step & 1
        x += [salu("s_add_u32", "s47", "s41", step * 512 * ROW),
              salu("s_add_u32", "m0", "s40", slot * 8 * RAWS + 64),
              dma("buffer_load_dwordx4", vRaw, sk, "s47", 0),
              salu("s_add_u32", "m0", "s40", slot * 8 * RAWS + 64 + 1024),
              dma("buffer_load_dwordx4", vRaw, sv, "s47", 0),
              salu("s_add_u32", "m0", "s40", slot * 8 * RAWS),
              salu("s_mov_b64", "exec", 15),
              dma("buffer_load_dwordx4", vHalo, sk, 0, 0, tag=f"raw{step}"),
              salu("s_mov_b64", "exec", -1)]
        if step < 3:
            x.append(valu("v_add_u32", vHalo, 512 * ROW, vHalo))
        return x

    def q_dma(m):
        return [salu("s_add_u32", "s47", "s41", m * 512 * ROW),
                salu("s_lshl_b32", "s48", "s3", 10), salu("s_add_u32", "m0", "s48", B_Q + 8192 * m),
                dma("buffer_load_dwordx4", vQ, sq, "s47", 0, tag=f"q{m}")]

    shk = VR("shk", 2)
    o += raw_dma(0)
    o += [bufld("buffer_load_dwordx2", shk, vSh, ssh, "s42")]
    o += raw_dma(1) + q_dma(0) + q_dma(1)
    vF, vG = fg_addr(o, g, r, c, "s38", "s39")
    vTr, vTrH, vUw, vYw, vYr, vQr, vOut, z = (VR(n) for n in ("vTr", "vTrH", "vUw", "vYw", "vYr", "vQr", "vOut", "z"))
    h, tau, zz = VR("h"), VR("tau"), VR("zz", 2)
    o += [valu("v_and_b32", h, 1, g), valu("v_lshrrev_b32", tau, 1, g),
          valu("v_lshl_add_u32", vTr, c, 2, r), valu("v_lshl_add_u32", vTr, tau, 5, vTr),
          valu("v_lshlrev_b32", vTr, 4, vTr), valu("v_lshl_add_u32", vTr, h, 3, vTr),
          valu("v_add_u32", vTr, "s40", vTr), valu("v_add_u32", vTr, 64, vTr),
          valu("v_min_u32", t, 1, c), valu("v_lshl_add_u32", vTrH, t, 8, vTr), valu("v_subrev_u32", vTrH, 64, vTrH),
          valu("v_lshl_add_u32", vUw, h, 2, c), valu("v_mul_u32_u24", vUw, USTR, vUw),
          valu("v_lshl_add_u32", t, tau, 2, r), valu("v_lshl_add_u32", vUw, t, 4, vUw),
          salu("s_lshl_b32", "s47", "s3", 7), salu("s_add_u32", "s47", "s47", B_U + UPAD),
          valu("v_add_u32", vUw, "s47", vUw),
          valu("v_lshl_add_u32", vYw, lane, 1, "s38"),
          valu("v_mul_u32_u24", vYr, KSTR, r), valu("v_lshl_add_u32", vYr, g, 5, vYr),
          valu("v_lshl_add_u32", vYr, c, 3, vYr),
          salu("s_lshl_b32", "s47", "s3", 1), salu("s_add_u32", "s47", "s47", B_Q),
          valu("v_add_u32", vQr, "s47", l16),
          valu("v_mul_u32_u24", vOut, OROW, lane), salu("s_add_u32", "s47", "s35", ROW),
          valu("v_add_u32", vOut, "s47", vOut)]
    zu, zk = VR("zu"), VR("zk")
    o += [valu("v_mov_b32", z, 0), valu("v_lshlrev_b32", t, 2, lane),
          valu("v_add_u32", zu, "s39", t), valu("v_add_u32", zk, "s38", t),
          salu("s_mov_b64", "exec", (1 << 24) - 1), dsw("ds_write_b32", zk, z),
          salu("s_mov_b32", "exec_lo", -1), salu("s_mov_b32", "exec_hi", 255), dsw("ds_write_b32", zu, z),
          salu("s_mov_b64", "exec", -1)]
    kd, ka = VR("kd"), VR("ka")
    o += [salu("s_and_b32", "s43", "s43", 2), salu("s_lshl_b32", "s43", "s43", 3), salu("s_lshr_b32", "s45", "s45", "s43"),
          salu("s_lshl_b32", "s45", "s45", 16), salu("s_lshl_b32", "s46", "s46", 16),
          valu("v_mov_b32", kd, "s45"), valu("v_add_f32", kd, "s46", kd), valu("v_cvt_pk_bf16_f32", kd, kd, kd),
          valu("v_mov_b32", ka, "s38"),
          waitvm("K"), dsw("ds_write_b16", ka, kd, KPAD)]
    cv = Conv(vF, vG)
    for l in [0] + list(range(8, 16)):
        o += cv.loadF(l)
    co = [VR(f"co{i}") for i in range(4)]
    o += [valu("v_lshlrev_b32", co[0], 16, shk[0]), valu("v_and_b32", co[1], 0xFFFF0000, shk[0]),
          valu("v_lshlrev_b32", co[2], 16, shk[1]), valu("v_and_b32", co[3], 0xFFFF0000, shk[1])]

    def kv(step):
        so_ = (step & 1) * 8 * RAWS
        kh, kr, vr_ = VR("kh", 2), VR("kr", 4), VR("vr", 4)
        rd = [waitvm(f"raw{step}"),
              dsr("ds_read_b64_tr_b16", kh, vTrH, so_), dsr("ds_read_b64_tr_b16", kr[0:2], vTr, so_),
              dsr("ds_read_b64_tr_b16", vr_[0:2], vTr, so_ + 1024), dsr("ds_read_b64_tr_b16", kr[2:4], vTr, so_ + 256),
              dsr("ds_read_b64_tr_b16", vr_[2:4], vTr, so_ + 1280)]
        k = {}
        x = []

        def unp(d, src, hi):
            return valu("v_and_b32", d, 0xFFFF0000, src) if hi else valu("v_lshlrev_b32", d, 16, src)

        for tt in (-3, -2, -1):
            k[tt] = VR(f"k{tt}")
            x.append(unp(k[tt], kh[(tt + 4) // 2], (tt + 4) & 1))
        outp = VR("kvo", 4)
        for tt in range(0, 8, 2):
            p = []
            for u in (tt, tt + 1):
                k[u] = VR(f"k{u}")
                x.append(unp(k[u], kr[u // 2], u & 1))
            a = [VR("ks"), VR("ks")]
            vv = [VR("vv"), VR("vv")]
            for e in (0, 1):
                x.append(valu("v_mul_f32", a[e], co[3], k[tt + e - 3]))
            for i in (2, 1):
                for e in (0, 1):
                    x.append(valu("v_fmac_f32", a[e], co[i], k[tt + e - i]))
            for e in (0, 1):
                x.append(unp(vv[e], vr_[tt // 2], e))
            for e in (0, 1):
                x.append(valu("v_fmac_f32", a[e], co[0], k[tt + e]))
            for e in (0, 1):
                x.append(valu("v_mul_f32", a[e], a[e], vv[e]))
            x.append(valu("v_cvt_pk_bf16_f32", outp[tt // 2], a[0], a[1]))
        x.append(dsw("ds_write_b128", vUw, outp, 1024 * step))
        return rd, x

    rd, x = kv(0)
    o += rd + x + [waitds(), barrier()]
    o += cv.loadG(0) + cv.loadG(1)
    o += raw_dma(2)

    def gate(j):
        qa, qb, pk = VR("qa"), VR("qb"), VR("pk")
        rds = [dsr("ds_read_u16_d16_hi", qa, vQr, 1024 * j), dsr("ds_read_u16_d16_hi", qb, vQr, 1024 * (j + 1))]
        x = [valu("v_mul_f32", qa, qa, cv.y[j]), valu("v_mul_f32", qb, qb, cv.y[j + 1]),
             valu("v_cvt_pk_bf16_f32", pk, qa, qb),
             dsw("ds_write_b16", vYw, pk, 128 * j), dsw("ds_write_b16_d16_hi", vYw, pk, 128 * (j + 1))]
        return rds, x

    def store(t0, nt):
        d, a = VR("od", 4), VR("oa")
        rows = nt * 8
        x = [salu("s_mul_i32", "s47", "s3", rows * 2), valu("v_add_u32", a, "s47", vYr),
             dsr("ds_read_b64_tr_b16", d[0:2], a, 128 * t0), dsr("ds_read_b64_tr_b16", d[2:4], a, 128 * t0 + 4 * KSTR),
             salu("s_mul_i32", "s48", "s3", rows * OROW), salu("s_add_u32", "s48", "s48", 64 * t0 * OROW)]
        st = [bufst("buffer_store_dwordx4", d, vOut, so, "s48")]
        if rows < 64:
            st = [salu("s_mov_b64", "exec", (1 << rows) - 1) if rows < 32 else salu("s_mov_b32", "exec_hi", 0)] + st + [salu("s_mov_b64", "exec", -1)]
        return x, st

    kvx = {}
    pend = []
    for n in range(16):
        if n < 8:
            tasks = [(n, I) for I in range(n + 1)]
            extra = [(8 + m, n) for m in range(7, n - 1, -1)]
        else:
            tasks = [(n, I) for I in range(n - 7, n + 1)]
            extra = []
        pre = []
        if n == 0:
            pass
        mm = []
        for p in (0, 1):
            mm += [(2 * J + p, 2 * I + p) for J, I in tasks]
        for J, I in extra:
            mm += [(2 * J, 2 * I), (2 * J + 1, 2 * I + 1)]
        back = [cv.mm(j, i) for j, i in mm]
        fill = []
        nxt = []
        if n < 15:
            nxt = cv.loadG(2 * n + 2) + cv.loadG(2 * n + 3)
        if n < 7:
            nxt = cv.loadF(n + 1) + nxt
        hor = []
        if n >= 1:
            hor = cv.horner(2 * n - 2) + cv.horner(2 * n - 1)
            pend.append(2 * n - 2)
        kvf = []
        s_ = n // 4 + 1
        if s_ <= 3:
            ph = n % 4
            if ph == 0:
                rd, x = kv(s_)
                kvx[s_] = x
                kvf = rd[:1] + [rd[1:]] + x[:20]
            elif ph == 1:
                kvf = kvx[s_][20:42]
            elif ph == 2:
                kvf = kvx[s_][42:]
        misc = []
        if n == 0:
            misc += [q_dma(2)]
        late = []
        if n == 1:
            late += [raw_dma(3), q_dma(3)]
        gat_r, gat = [], []
        if n >= 4:
            todo = pend[:2] if n < 8 else pend[:]
            todo = [j for j in todo]
            for j in todo:
                a, b = gate(j)
                gat_r += a
                gat += b
                pend.remove(j)
        bar, st1, st2 = [], [], []
        if n == 3:
            bar = [waitvm("q1"), waitds(), barrier()]
        if n == 7:
            bar = [waitvm("q2"), waitds(), barrier()]
            st1, st2 = store(0, 8)
        if n == 11:
            bar = [waitvm("q3"), waitds(), barrier()]
            st1, st2 = store(8, 8)
        if n == 13:
            bar = [waitds(), barrier()]
            st1, st2 = store(16, 8)
        if n == 15:
            bar = [waitds(), barrier()]
            st1, st2 = store(24, 4)
        if n in (3, 7, 11):
            fill = gat_r + hor + gat + [bar] + nxt + st1 + [st2]
        elif n in (13, 15):
            fill = [bar] + gat_r + st1 + nxt + hor + [st2] + gat
        else:
            a, b = list(hor), list(kvf)
            mix = []
            while a or b:
                if b:
                    mix.append(b.pop(0))
                if a:
                    mix.append(a.pop(0))
                if b:
                    mix.append(b.pop(0))
            fill = misc + nxt + gat_r + mix + gat + late
        fill = [f for f in fill if f != []]
        o += weave(back, fill, 1)
    o += cv.horner(30) + cv.horner(31)
    a, b = gate(30)
    o += a + b + [waitds(), barrier()]
    st1, st2 = store(28, 4)
    o += st1 + st2
    return o


XSTR = 544
NXY = 59
A_XY, A_U = 0, 4 * NXY * XSTR
A_KT = A_U + 4 * USTR
A_END = A_KT + 4 * KSTR
XROWS = [0, 1, 2, 3, 4, 5, 6, 7, 256, 258, 260, 262, 264, 512, 516, 520, 768, 772, 776,
         1024, 1032, 1280, 1288, 1536, 1544, 1792, 1800]
RT = [[0, 1, 2, 3, 4, 5, 6, 7, 256, 256, 258, 260, 260, 260, 262, 264],
      [512, 512, 512, 516, 516, 516, 520, 520, 768, 768, 768, 772, 772, 772, 776, 776],
      [1024, 1032, 1024, 1032, 1280, 1288, 1280, 1288, 1536, 1544, 1536, 1544, 1792, 1800, 1792, 1800]]
SPLIT = 22


def gen_A_head():
    o = []
    o += [smem("s_load_dwordx16", "s[8:23]", "s[0:1]", 0), smem("s_load_dwordx2", "s[28:29]", "s[0:1]", 64),
          smem("s_load_dwordx2", "s[24:25]", "s[0:1]", 120),
          salu("s_mov_b32", "s26", 4718592), salu("s_mov_b32", "s27", 0x20000)]
    o += [salu("s_sub_u32", "s35", "s2", NB), salu("s_and_b32", "s34", "s35", 7), salu("s_mul_i32", "s34", "s34", 18),
          salu("s_lshr_b32", "s35", "s35", 3), salu("s_add_u32", "s34", "s34", "s35"),
          salu("s_lshl_b32", "s35", "s34", 3),
          salu("s_and_b32", "s30", "s3", 3), salu("s_lshr_b32", "s31", "s3", 2),
          salu("s_lshl_b32", "s36", "s34", 2), salu("s_add_u32", "s36", "s36", "s30"),
          salu("s_lshl_b32", "s37", "s36", 8), salu("s_lshl_b32", "s47", "s31", 7), salu("s_add_u32", "s37", "s37", "s47"),
          salu("s_mul_i32", "s38", "s30", KSTR), salu("s_add_u32", "s38", "s38", A_KT),
          salu("s_mul_i32", "s39", "s30", USTR), salu("s_add_u32", "s39", "s39", A_U),
          salu("s_mul_i32", "s40", "s30", NXY * XSTR),
          salu("s_mul_i32", "s41", "s3", 128 * ROW), salu("s_add_u32", "s41", "s41", "s35"),
          salu("s_lshl_b32", "s43", "s36", 1), salu("s_and_b32", "s44", "s43", -4)]
    lane, g, r, c = lane_fields(o)
    vP, vU, t = VR("vP"), VR("vU"), VR("t")
    o += [valu("v_lshl_add_u32", vP, lane, 1, "s37"),
          valu("v_lshrrev_b32", t, 1, lane), valu("v_mul_u32_u24", vU, 4 * ROW, t),
          valu("v_and_b32", t, 1, lane), valu("v_lshl_add_u32", vU, t, 2, vU), valu("v_add_u32", vU, "s41", vU)]
    prm = [VR(n) for n in ("Are", "Aim", "Bre", "Bim", "Cre", "Cim")]

    def gl(op, d, voff, base, off=0, tag=None):
        return Ins(op, [d, voff, base], "vml", [d], [voff, base], f"offset:{off}" if off else "", tag=tag)

    o += [smem("s_load_dword", "s45", "s[22:23]", "s44"), smem("s_load_dword", "s46", "s[28:29]", "s44")]
    for i, p in enumerate(prm):
        o.append(gl("global_load_short_d16_hi", p, vP, f"s[{10 + 2 * i}:{11 + 2 * i}]"))
    ur = [[VR(f"ur{s}{i}") for i in range(4)] for s in range(2)]
    for i in range(4):
        o.append(gl("global_load_dword", ur[0][i], vU, "s[8:9]", i * ROW))
    vU2 = VR("vU2")
    o.append(valu("v_add_u32", vU2, 1024 * ROW, vU))
    for i in range(4):
        o.append(gl("global_load_dword", ur[1][i], vU2, "s[8:9]", i * ROW))
    vF, vG = fg_addr(o, g, r, c, "s38", "s39")
    vXw, vUw, vYw, vYr, vOut, z = (VR(n) for n in ("vXw", "vUw", "vYw", "vYr", "vOut", "z"))
    row = VR("row")
    vB, vA, vK01, vK2, sel = VR("vB"), [VR("vA0"), VR("vA1"), VR("vA2")], VR("vK01"), VR("vK2"), VR("sel")
    tt = VR("tt", 2)
    o += [salu("s_lshl_b32", "s47", "s31", 8), salu("s_add_u32", "s47", "s47", "s40"),
          valu("v_lshl_add_u32", vXw, lane, 2, "s47"),
          valu("v_and_b32", t, 1, lane), valu("v_mul_u32_u24", vUw, 2 * USTR, t),
          valu("v_lshrrev_b32", t, 1, lane), valu("v_lshl_add_u32", vUw, t, 3, vUw),
          salu("s_lshl_b32", "s47", "s3", 8), salu("s_add_u32", "s47", "s47", A_U + UPAD),
          valu("v_add_u32", vUw, "s47", vUw),
          salu("s_mul_i32", "s47", "s30", KSTR),
          valu("v_lshl_add_u32", vYw, lane, 1, "s47"),
          valu("v_mul_u32_u24", vYr, KSTR, r), valu("v_lshl_add_u32", vYr, g, 5, vYr),
          valu("v_lshl_add_u32", vYr, c, 3, vYr),
          valu("v_mul_u32_u24", vOut, OROW, lane), valu("v_add_u32", vOut, "s35", vOut),
          valu("v_and_b32", row, 15, lane),
          salu("s_mul_i32", "s47", "s31", 16 * XSTR), salu("s_add_u32", "s47", "s47", "s40"),
          valu("v_mul_u32_u24", vB, XSTR, row), valu("v_lshl_add_u32", vB, g, 4, vB), valu("v_add_u32", vB, "s47", vB),
          valu("v_lshlrev_b32", t, 2, row)]
    base = VR("base")
    o += [valu("v_lshlrev_b32", base, 4, g), valu("v_add_u32", base, "s40", base)]
    kx = VR("kx")
    o += [valu("v_mov_b32", kx, XSTR)]
    for R in range(3):
        idx = [XROWS.index(x) for x in RT[R]]
        lo = min(idx)
        tab = sum((i - lo) << (4 * k) for k, i in enumerate(idx))
        o += [salu("s_mov_b32", "s48", tab & 0xFFFFFFFF), salu("s_mov_b32", "s49", tab >> 32),
              valu("v_lshrrev_b64", tt, t, "s[48:49]"), valu("v_and_b32", vA[R], 15, tt[0]),
              valu("v_mad_u32_u24", vA[R], vA[R], kx, base), valu("v_add_u32", vA[R], (32 + lo) * XSTR, vA[R])]
    o += [salu("s_lshl_b32", "s47", "s31", 8), salu("s_add_u32", "s47", "s47", "s38"), salu("s_add_u32", "s47", "s47", KPAD),
          valu("v_lshl_add_u32", vK2, row, 4, "s47"),
          valu("v_and_b32", t, 1, g), valu("v_lshl_add_u32", vK01, t, 3, vK2),
          valu("v_lshrrev_b32", t, 1, g), valu("v_lshl_add_u32", vK01, t, 9, vK01),
          valu("v_lshl_add_u32", vK2, g, 9, vK2),
          valu("v_and_b32", t, 1, lane), valu("v_mul_u32_u24", t, 0x0404, t), valu("v_add_u32", sel, 0x07060100, t)]
    zu, zk = VR("zu"), VR("zk")
    o += [valu("v_mov_b32", z, 0), valu("v_lshlrev_b32", t, 2, lane),
          valu("v_add_u32", zu, "s39", t), valu("v_add_u32", zk, "s38", t),
          salu("s_mov_b64", "exec", (1 << 24) - 1), dsw("ds_write_b32", zk, z),
          salu("s_mov_b32", "exec_lo", -1), salu("s_mov_b32", "exec_hi", 255), dsw("ds_write_b32", zu, z),
          salu("s_mov_b64", "exec", -1)]
    dt, dsk = VR("dt"), VR("dsk")
    o += [salu("s_and_b32", "s43", "s43", 2), salu("s_lshl_b32", "s43", "s43", 3),
          salu("s_lshr_b32", "s45", "s45", "s43"), salu("s_lshl_b32", "s45", "s45", 16),
          salu("s_lshr_b32", "s46", "s46", "s43"), salu("s_lshl_b32", "s46", "s46", 16),
          salu("s_cmp_eq_u32", None, "s31", 0), salu("s_cselect_b32", "s46", "s46", 0),
          valu("v_mov_b32", dt, 0x3FB8AA3B), valu("v_mul_f32", dt, "s45", dt), valu("v_exp_f32", dt, dt),
          valu("v_mov_b32", dsk, 0),
          valu("v_cvt_pk_bf16_f32", dt, dt, dt), valu("v_and_b32", dt, 0xFFFF0000, dt),
          Ins("v_writelane_b32", [dsk, "s46", 0], "valu", [dsk], [dsk, "s46"])]
    Are, Aim, Bre, Bim, Cre, Cim = prm
    ar, ai = VR("ar"), VR("ai")
    o += [valu("v_mul_f32", ar, dt, Are), valu("v_mul_f32", ai, dt, Aim),
          valu("v_mul_f32", ar, 0x3FB8AA3B, ar), valu("v_mul_f32", ai, 0x3E22F983, ai)]

    def cexp(mult):
        e, p, w = VR("e"), VR("p"), (VR("wr"), VR("wi"))
        x = []
        if mult == 1:
            x += [valu("v_exp_f32", e, ar), valu("v_fract_f32", p, ai)]
        else:
            m = {8: 0x41000000, 256: 0x43800000}[mult]
            x += [valu("v_mul_f32", e, m, ar), valu("v_mul_f32", p, m, ai), valu("v_exp_f32", e, e), valu("v_fract_f32", p, p)]
        x += [valu("v_cos_f32", w[0], p), valu("v_sin_f32", w[1], p), valu("v_mul_f32", w[0], e, w[0]), valu("v_mul_f32", w[1], e, w[1])]
        return w, x

    def cmul(a, b):
        d = (VR("cr"), VR("ci"))
        return d, [valu("v_mul_f32", d[0], a[0], b[0]), valu("v_mul_f32", d[1], a[0], b[1]),
                   valu("v_fma_f32", d[0], Neg(a[1]), b[1], d[0]), valu("v_fmac_f32", d[1], a[1], b[0])]

    def put(rowi, a, neg):
        pk = VR("pk")
        return [valu("v_cvt_pk_bf16_f32", pk, a[0], Neg(a[1]) if neg else a[1]), dsw("ds_write_b32", vXw, pk, XSTR * rowi)]

    w8, x8 = cexp(8)
    w1, x1 = cexp(1)
    w256, x256 = cexp(256)
    o += x8 + x1
    one = VR("one")
    o += [valu("v_mov_b32", one, 0x3F80), dsw("ds_write_b32", vXw, one, 0)]
    o += [valu("v_mul_f32", Bre, dt, Bre), valu("v_mul_f32", Bim, dt, Bim)]
    cc, x = cmul((Cre, Cim), (Bre, Bim))
    o += x + x256
    ys = put(1, w8, False)
    y = w8
    for m in range(2, 32):
        y, x = cmul(y, w8)
        ys += x + put(m, y, False)
    X = {0: cc}
    xs = put(32, cc, True)

    def xstep(dst, src, w):
        X[dst], x = cmul(X[src], w)
        return x + (put(32 + XROWS.index(dst), X[dst], True) if dst in XROWS else [])

    xs += xstep(8, 0, w8)
    for i in range(1, 8):
        xs += xstep(i, i - 1, w1)
        if i in (2, 6):
            xs += xstep(256 + i, i, w256)
        if i == 4:
            xs += xstep(260, 4, w256) + xstep(516, 260, w256) + xstep(772, 516, w256)
    for q in range(1, 8):
        xs += xstep(256 * q, 256 * (q - 1), w256) + xstep(256 * q + 8, 256 * (q - 1) + 8, w256)
    while xs or ys:
        for s_ in (ys, xs):
            if s_:
                o.append(s_.pop(0))

    def uput(step):
        d = VR("ud", 4)
        u_ = ur[step]
        return [valu("v_perm_b32", d[0], u_[1], u_[0], "s50"), valu("v_perm_b32", d[1], u_[3], u_[2], "s50"),
                valu("v_perm_b32", d[2], u_[1], u_[0], "s51"), valu("v_perm_b32", d[3], u_[3], u_[2], "s51"),
                dsw("ds_write_b64", vUw, d[0:2], 2048 * step), dsw("ds_write_b64", vUw, d[2:4], 2048 * step + USTR)]

    o += [salu("s_mov_b32", "s50", 0x05040100), salu("s_mov_b32", "s51", 0x07060302)]
    o += [waitds(), barrier()]
    bf = [VR(f"bf{k}", 4) for k in range(8)]
    af = [[VR(f"af{R}{k}", 4) for k in range(8)] for R in range(3)]
    acc = [VR(f"fa{R}", 4) for R in range(3)]
    for k in range(8):
        o += [dsr("ds_read_b128", bf[k], vB, 64 * k), dsr("ds_read_b128", af[0][k], vA[0], 64 * k)]
    back, fill = [], []
    for R in range(3):
        for k in range(8):
            back.append(mfma16(acc[R], af[R][k], bf[k], 0 if k == 0 else acc[R]))
    for R in (1, 2):
        fill += [dsr("ds_read_b128", af[R][k], vA[R], 64 * k) for k in range(8)]
    o += fill[:4] + weave(back, fill[4:], 0, 12)
    d0, d1, d2 = VR("d0", 2), VR("d1", 2), VR("d2", 4)
    o += uput(0)
    o += [valu("v_add_f32", acc[0][0], acc[0][0], dsk),
          valu("v_cvt_pk_bf16_f32", d0[0], acc[0][0], acc[0][1]), valu("v_cvt_pk_bf16_f32", d0[1], acc[0][2], acc[0][3]),
          dsw("ds_write_b64", vK01, d0, 0),
          valu("v_cvt_pk_bf16_f32", d1[0], acc[1][0], acc[1][1]), valu("v_cvt_pk_bf16_f32", d1[1], acc[1][2], acc[1][3]),
          dsw("ds_write_b64", vK01, d1, 1024),
          valu("v_cvt_pk_bf16_f32", d2[0], acc[2][0], acc[2][0]), valu("v_cvt_pk_bf16_f32", d2[3], acc[2][1], acc[2][1]),
          valu("v_cvt_pk_bf16_f32", d2[1], acc[2][0], acc[2][0]), valu("v_perm_b32", d2[2], d2[3], d2[0], sel),
          dsw("ds_write_b128", vK2, d2, 2048),
          waitds(), barrier()]
    return o, dict(vF=vF, vG=vG, vYw=vYw, vYr=vYr, vOut=vOut, uput=uput)


A_SG = [([0, 1, 2, 3, 4, 5, 6, 7], 64), ([8, 9, 10, 11, 12, 13, 23, 24], 64), ([14, 15, 16, 17, 18, 25, 26, 27], 64),
        ([19, 20, 28, 29], 32), ([21, 22, 30, 31], 32)]


def gen_A_conv(cx, hi):
    o = []
    cv = Conv(cx["vF"], cx["vG"])
    vYw, vYr, vOut = cx["vYw"], cx["vYr"], cx["vOut"]

    def stage(js):
        x = []
        js = list(js)
        while js:
            pk = VR("pk")
            if len(js) >= 2:
                a, b = js.pop(0), js.pop(0)
                x += [valu("v_cvt_pk_bf16_f32", pk, cv.y[a], cv.y[b]), dsw("ds_write_b16", vYw, pk, 128 * a),
                      dsw("ds_write_b16_d16_hi", vYw, pk, 128 * b)]
            else:
                a = js.pop(0)
                x += [valu("v_cvt_pk_bf16_f32", pk, cv.y[a], cv.y[a]), dsw("ds_write_b16", vYw, pk, 128 * a)]
        return x

    def store(k):
        tiles, rows = A_SG[k]
        if rows == 64:
            st = [2 * t for t in tiles]
        else:
            st = [2 * t + h for t in tiles for h in (0, 1)]
        tab = sum(x << (8 * w) for w, x in enumerate(st))
        d, a = VR("od", 2), VR("oa")
        x = [salu("s_mov_b32", "s48", tab & 0xFFFFFFFF), salu("s_mov_b32", "s49", tab >> 32),
             salu("s_lshl_b32", "s47", "s3", 3), salu("s_lshr_b64", "s[48:49]", "s[48:49]", "s47"),
             salu("s_and_b32", "s48", "s48", 255), salu("s_lshl_b32", "s49", "s48", 6),
             valu("v_add_u32", a, "s49", vYr), dsr("ds_read_b64_tr_b16", d, a, 0),
             salu("s_mul_i32", "s48", "s48", 32 * OROW)]
        s_ = [bufst("buffer_store_dwordx2", d, vOut, "s[24:27]", "s48")]
        if rows < 64:
            s_ = [salu("s_mov_b32", "exec_hi", 0)] + s_ + [salu("s_mov_b64", "exec", -1)]
        return x, s_

    if not hi:
        order = [(j, j - 2 * l) for j in range(SPLIT + 1) for l in range(j // 2, -1, -1)]
        bars = [30, 76, 112, 130]
    else:
        order = []
        for J in (11, 12):
            order += [(2 * J + p, 2 * I + p) for I in range(8) for p in (0, 1)]
        order += [(26 + p, 2 * I + p) for I in range(2) for p in (0, 1)]
        for J in (11, 12):
            for p in (0, 1):
                order += [(2 * J + p, 2 * I + p) for I in range(8, J + 1)]
        for p in (0, 1):
            order += [(26 + p, 2 * I + p) for I in range(2, 14)]
        for J in (14, 15):
            for p in (0, 1):
                order += [(2 * J + p, 2 * I + p) for I in range(J + 1)]
        bars = [30, 72, 100, 124]
    n = len(order)
    needF, needG, done = {}, {}, {}
    for k, (j, i) in enumerate(order):
        needF.setdefault((j - i) // 2, k)
        needG.setdefault(i, k)
        done[j] = k
    LEAD = 6
    ev = {k: [] for k in range(-1, n + 1)}
    for l, k in sorted(needF.items(), key=lambda x: x[1]):
        ev[max(-1, k - LEAD)].append(("F", l))
    for i, k in sorted(needG.items(), key=lambda x: x[1]):
        kk = max(-1, k - LEAD)
        if i >= 16:
            kk = max(kk, bars[0])
            assert kk < k, (i, k)
        ev[kk].append(("G", i))
    loads = {k: sum(((cv.loadF(x) if t == "F" else cv.loadG(x)) for t, x in e), []) for k, e in ev.items()}
    o += loads[-1]
    queue = []
    staged = set()
    tiles = sorted(done, key=lambda j: done[j])
    unstaged = []
    bi = 0
    for k, (j, i) in enumerate(order):
        o.append(cv.mm(j, i))
        if bi < len(bars) and k == bars[bi]:
            for f in queue:
                o += f if isinstance(f, list) else [f]
            queue = []
            o += stage(unstaged)
            staged |= set(unstaged)
            unstaged = []
            mine = [t for t in A_SG[bi][0] if (t > SPLIT) == bool(hi)]
            assert all(t in staged for t in mine), (hi, bi, mine, staged)
            if bi == 0:
                o += cx["uput"](1)
            o += [waitds(), barrier()]
            a, b = store(bi)
            queue += a + [b]
            bi += 1
        o += loads[k]
        for t in tiles:
            if done[t] + 3 == k:
                red = hi and t == SPLIT
                queue += cv.horner(t, final=not red)
                if not red:
                    unstaged.append(t)
                    if len(unstaged) == 2:
                        queue += stage(unstaged)
                        staged |= set(unstaged)
                        unstaged = []
        for _ in range(2):
            if queue:
                f = queue.pop(0)
                o += f if isinstance(f, list) else [f]
    for f in queue:
        o += f if isinstance(f, list) else [f]
    for t in tiles:
        if done[t] + 3 >= n:
            o += cv.horner(t)
            unstaged.append(t)
    o += stage(unstaged) + [waitds(), barrier()]
    a, b = store(4)
    o += a + b
    return o


def build():
    hdr = open("cdna_kernels/" + NAME + ".s.ref").read().split("\n")
    cut = [i for i, l in enumerate(hdr) if "@launch" in l and l.startswith("; @launch")][0]
    lds = max(A_END, B_END)
    assert lds <= 163840
    L = hdr[:cut] + [f"; @launch grid=({NA + NB},1,1) block=(512,1,1) lds={lds}",
                     '.amdgcn_target "amdgcn-amd-amdhsa--gfx950"', ".text", f".globl {NAME}_kernel", ".p2align 8",
                     f".type {NAME}_kernel,@function", f"{NAME}_kernel:"]
    L += [f"s_cmp_ge_u32 s2, {NA + NB}", "s_cbranch_scc1 L_end", "v_lshrrev_b32 v1, 6, v0", f"s_cmp_ge_u32 s2, {NB}",
          "v_readfirstlane_b32 s3, v1", "s_cbranch_scc1 L_A", "s_nop 1"]
    st = {}
    b = gen_B()
    hwB = allocate(b, 256)
    L += finalize(b, st) + ["s_endpgm"]
    print("B: vgprs", hwB, st, file=sys.stderr)
    h, cx = gen_A_head()
    lo, hi = gen_A_conv(cx, 0), gen_A_conv(cx, 1)
    hwA = allocate(h + lo + hi, 256)
    L += ["L_A:", "s_nop 1"]
    fh = finalize(h + [raw("@@SPLIT")] + lo, st)
    print("A: vgprs", hwA, "head+lo", st, file=sys.stderr)
    k = fh.index("@@SPLIT")
    fh2 = finalize(h + [raw("@@SPLIT")] + hi, st)
    print("A: head+hi", st, file=sys.stderr)
    k2 = fh2.index("@@SPLIT")
    assert fh[:k] == fh2[:k2]
    L += fh[:k] + ["s_cmp_ge_u32 s3, 4", "s_cbranch_scc1 L_Ahi"] + fh[k + 1:] + ["s_endpgm", "L_Ahi:"] + fh2[k2 + 1:]
    L += ["L_end:", "s_endpgm"]
    nv = max(hwA, hwB)
    nv = (nv + 7) // 8 * 8
    L += ['.section .rodata,"a"', ".p2align 6", f".amdhsa_kernel {NAME}_kernel", f"  .amdhsa_next_free_vgpr {nv}",
          "  .amdhsa_next_free_sgpr 64", f"  .amdhsa_accum_offset {nv}", "  .amdhsa_group_segment_fixed_size 0",
          "  .amdhsa_kernarg_size 144", "  .amdhsa_user_sgpr_count 2", "  .amdhsa_user_sgpr_kernarg_segment_ptr 1",
          "  .amdhsa_system_sgpr_workgroup_id_x 1", ".end_amdhsa_kernel", ""]
    return "\n".join(L)


if __name__ == "__main__":
    out = sys.argv[1] if len(sys.argv) > 1 else "cdna_kernels/" + NAME + ".s"
    open(out, "w").write(build())
```

```python
import re


class VR:
    _n = 0

    def __init__(self, name, size=1, align=None, fixed=None):
        self.name = name
        self.size = size
        self.align = align or (1 if size == 1 else 2)
        self.phys = fixed
        self.fixed = fixed is not None
        VR._n += 1
        self.id = VR._n

    def __getitem__(self, i):
        if isinstance(i, slice):
            a = i.start or 0
            b = self.size if i.stop is None else i.stop
            return Sub(self, a, b - a)
        return Sub(self, i, 1)

    def regs(self):
        return [(self, k) for k in range(self.size)]

    def txt(self):
        return Sub(self, 0, self.size).txt()


class Sub:
    def __init__(self, vr, off, size):
        assert 0 <= off and off + size <= vr.size, (vr.name, off, size)
        self.vr, self.off, self.size = vr, off, size

    def __getitem__(self, i):
        if isinstance(i, slice):
            a = i.start or 0
            b = self.size if i.stop is None else i.stop
            return Sub(self.vr, self.off + a, b - a)
        return Sub(self.vr, self.off + i, 1)

    def regs(self):
        return [(self.vr, self.off + k) for k in range(self.size)]

    def txt(self):
        p = self.vr.phys + self.off
        if self.size == 1:
            return f"v{p}"
        assert p % 2 == 0, (self.vr.name, p)
        return f"v[{p}:{p + self.size - 1}]"


def isv(x):
    return isinstance(x, (VR, Sub))


_SRE = re.compile(r"^-?s(\d+)$|^s\[(\d+):(\d+)\]$")


def sregs(x):
    if not isinstance(x, str):
        return []
    if x in ("m0", "vcc", "exec"):
        return [x]
    m = _SRE.match(x)
    if not m:
        return []
    if m.group(1) is not None:
        return [f"s{m.group(1)}"]
    return [f"s{k}" for k in range(int(m.group(2)), int(m.group(3)) + 1)]


class Neg:
    def __init__(self, v):
        self.v = v


class Ins:
    def __init__(self, op, ops, kind, dst=(), src=(), mods="", **kw):
        self.op, self.ops, self.kind, self.mods = op, ops, kind, mods
        self.wv, self.rv, self.ws, self.rs = [], [], [], []
        for d in dst:
            if isv(d):
                self.wv += d.regs()
            else:
                self.ws += sregs(d)
        for s in src:
            if isinstance(s, Neg):
                s = s.v
            if isv(s):
                self.rv += s.regs()
            else:
                self.rs += sregs(s)
        self.dppsrc = kw.get("dppsrc", [])
        self.srcc = kw.get("srcc", [])
        self.passes = kw.get("passes", 0)
        self.tag = kw.get("tag")
        self.wide = kw.get("wide", [])
        self.arg = kw.get("arg")

    def text(self):
        def f(o):
            if isinstance(o, Neg):
                return "-" + f(o.v)
            if isv(o):
                return o.txt()
            if isinstance(o, int):
                return str(o) if -16 <= o <= 64 else hex(o & 0xFFFFFFFF)
            return str(o)

        t = self.op
        if self.ops:
            t += " " + ", ".join(f(o) for o in self.ops)
        if self.mods:
            t += " " + self.mods
        return t


TRANS = {"v_exp_f32", "v_log_f32", "v_rcp_f32", "v_rsq_f32", "v_sqrt_f32", "v_sin_f32", "v_cos_f32"}
RMW = {"v_fmac_f32"}


def valu(op, d, *s, mods=""):
    src = list(s) + ([d] if op in RMW else [])
    return Ins(op, [d, *s], "trans" if op in TRANS else "valu", [d], src, mods)


def dpp(op, d, s0, s1, ctrl, partial=True):
    ops = [d, s0] + ([s1] if s1 is not None else [])
    src = [s0] + ([s1] if s1 is not None else [])
    i = Ins(op + "_dpp", ops, "valu", [d], src, ctrl, dppsrc=s0.regs())
    return i


def salu(op, d, *s):
    return Ins(op, [d, *s] if d is not None else list(s), "salu", [d] if d is not None else [], s)


def smem(op, d, base, off):
    return Ins(op, [d, base, off], "smem", [d], [base] + ([off] if isinstance(off, str) else []))


def mfma16(d, a, b, c):
    srcc = c.regs() if isv(c) else []
    return Ins("v_mfma_f32_16x16x32_bf16", [d, a, b, c], "mfma", [d], [a, b, c], srcc=srcc, passes=4)


def mfma32(d, a, b, c):
    srcc = c.regs() if isv(c) else []
    return Ins("v_mfma_f32_32x32x16_bf16", [d, a, b, c], "mfma", [d], [a, b, c], srcc=srcc, passes=8)


def dsr(op, d, addr, off=0):
    assert 0 <= off < 65536, off
    return Ins(op, [d, addr], "dsr", [d], [addr], f"offset:{off}" if off else "")


def dsw(op, addr, data, off=0):
    assert 0 <= off < 65536, off
    return Ins(op, [addr, data], "dsw", [], [addr, data], f"offset:{off}" if off else "")


def bufld(op, d, voff, srd, soff=0, off=0, tag=None, fl=""):
    assert 0 <= off < 4096
    m = "offen" + (f" offset:{off}" if off else "") + (" " + fl if fl else "")
    return Ins(op, [d, voff, srd, soff], "vml", [d], [voff, srd, soff], m, tag=tag)


def dma(op, voff, srd, soff=0, off=0, tag=None, fl=""):
    assert 0 <= off < 4096
    m = "offen" + (f" offset:{off}" if off else "") + (" " + fl if fl else "") + " lds"
    return Ins(op, [voff, srd, soff], "dma", [], [voff, srd, soff, "m0"], m, tag=tag)


def bufst(op, data, voff, srd, soff=0, off=0, fl=""):
    assert 0 <= off < 4096
    m = "offen" + (f" offset:{off}" if off else "") + (" " + fl if fl else "")
    wide = data.regs() if data.size >= 3 else []
    return Ins(op, [data, voff, srd, soff], "vms", [], [data, voff, srd, soff], m, wide=wide)


def waitvm(tag):
    return Ins("waitvm", [], "waitvm", arg=tag)


def waitds(arg=None):
    return Ins("waitds", [], "waitds", arg=arg)


def barrier():
    return Ins("s_barrier", [], "bar")


def raw(text, kind="other"):
    return Ins(text, [], kind)


def weave(back, fill, start=0, end=None):
    end = len(back) if end is None else end
    n = end - start
    out = list(back[:start])
    k = 0
    for i in range(n):
        out.append(back[start + i])
        upto = (len(fill) * (i + 1) + n - 1) // n
        while k < upto:
            f = fill[k]
            out += f if isinstance(f, list) else [f]
            k += 1
    out += back[end:]
    assert k == len(fill)
    return out


def allocate(ins, nregs, reserved=()):
    first, last, vrs = {}, {}, {}
    for i, x in enumerate(ins):
        for vr, _ in x.wv + x.rv:
            vrs[vr.id] = vr
            first.setdefault(vr.id, i)
            last[vr.id] = i
    iv = [[] for _ in range(nregs)]
    for r in reserved:
        iv[r].append((-1, 1 << 30))
    for vr in vrs.values():
        if vr.fixed:
            for k in range(vr.size):
                iv[vr.phys + k].append((-1, last[vr.id]))
    hw = 0

    def gap(p, a, b):
        g = 1 << 30
        for x, y in iv[p]:
            if x <= b and a <= y:
                return None
            if y < a:
                g = min(g, a - y)
        return g

    for vid in sorted(first, key=lambda v: (-(vrs[v].size > 4), -(vrs[v].size == 4 and last[v] - first[v] > 60), first[v])):
        vr = vrs[vid]
        if vr.fixed:
            hw = max(hw, vr.phys + vr.size)
            continue
        a, b = first[vid], last[vid]
        best = None
        for p in range(0, nregs - vr.size + 1, vr.align):
            gs = [gap(p + k, a, b) for k in range(vr.size)]
            if None in gs:
                continue
            if min(gs) > 12:
                best = p
                break
            if best is None:
                best = p
        if best is None:
            live = [v.name for v in vrs.values() if v.phys is not None and last[v.id] >= a and first[v.id] <= a]
            raise RuntimeError(f"out of VGPRs for {vr.name} at {a}: live={live}")
        vr.phys = best
        for k in range(vr.size):
            iv[best + k].append((a, b))
        hw = max(hw, best + vr.size)
    return hw


def finalize(ins, stats=None, eager=4):
    out = []
    P = lambda regs: [vr.phys + k for vr, k in regs]
    pos = 0
    lds_q = []
    lds_t = []
    nm = [0]
    smem_pend = set()
    vm_q = []
    w_valu, w_trans, w_mfma, r_srcc, w_sv, w_m0, wide = {}, {}, {}, {}, {}, [-99], {}
    nn = 0
    cond = []

    def emit(t, states=1):
        nonlocal pos
        out.append(t)
        pos += states

    def wait(vm=None, lg=None):
        nonlocal lds_q, vm_q, smem_pend, lds_t
        parts = []
        if vm is not None:
            vm = min(vm, 62)
            parts.append(f"vmcnt({vm})")
            vm_q = vm_q[len(vm_q) - vm:] if vm else []
        if lg is not None:
            lg = min(lg, 14)
            while eager and lg > 0 and nm[0] - lds_t[len(lds_t) - lg] >= eager:
                lg -= 1
            lds_t = lds_t[len(lds_t) - lg:] if lg else []
            parts.append(f"lgkmcnt({lg})")
            lds_q = lds_q[len(lds_q) - lg:] if lg else []
            if lg == 0:
                smem_pend = set()
        emit("s_waitcnt " + " ".join(parts))

    for x in ins:
        if x.kind == "waitvm":
            idx = [i for i, (_, t) in enumerate(vm_q) if t == x.arg]
            if idx:
                wait(vm=len(vm_q) - 1 - idx[-1])
            continue
        if x.kind == "condbegin":
            emit(x.op)
            cond[:] = [(list(lds_q), list(lds_t), list(vm_q), set(smem_pend)), pos]
            continue
        if x.kind == "condend":
            out.append(x.op)
            p0 = cond.pop()
            lds_q, lds_t, vm_q, smem_pend = cond.pop()
            for dct in (w_valu, w_trans, w_sv, wide):
                for k_ in dct:
                    dct[k_] = min(dct[k_], p0 - 1)
            w_m0[0] = min(w_m0[0], p0 - 1)
            pos = p0
            continue
        if x.kind == "vmclear":
            emit(x.op)
            vm_q = []
            continue
        if x.kind == "waitds":
            if x.arg == "w" and not smem_pend:
                idx = [i for i, d in enumerate(lds_q) if not d]
                if idx:
                    wait(lg=len(lds_q) - 1 - idx[-1])
            elif lds_q or smem_pend:
                wait(lg=0)
            continue
        rv, wv = P(x.rv), P(x.wv)
        touch = set(rv) | set(wv)
        vm = lg = None
        for i, d in enumerate(lds_q):
            if d & touch:
                lg = len(lds_q) - 1 - i
        if smem_pend & (set(x.rs) | set(x.ws)):
            lg = 0
        if lg is not None and smem_pend:
            lg = 0
        for i, (d, _) in enumerate(vm_q):
            if d & touch:
                vm = len(vm_q) - 1 - i
        if vm is not None or lg is not None:
            wait(vm, lg)
        need = 0

        def req(p, n):
            nonlocal need
            need = max(need, p + n + 1 - pos)

        isvalu = x.kind in ("valu", "trans")
        if x.kind == "mfma":
            srcc = set(P(x.srcc))
            ab = set(rv) - srcc
            for r in rv:
                if r in w_valu:
                    req(w_valu[r], 2)
            for r in ab:
                if r in w_mfma:
                    req(w_mfma[r][0], 8 if w_mfma[r][1] == 4 else 12)
            for r in srcc | set(wv):
                if r in w_mfma:
                    p, ps, dset = w_mfma[r]
                    if not (dset == srcc and ps == x.passes):
                        req(p, (6 if ps == 4 else 10))
        else:
            for r in touch:
                if r in w_mfma:
                    req(w_mfma[r][0], 8 if w_mfma[r][1] == 4 else 12)
            if isvalu or x.kind in ("dsr", "vml"):
                for r in wv:
                    if r in r_srcc:
                        req(r_srcc[r][0], 3 if r_srcc[r][1] == 4 else 7)
                    if r in wide:
                        req(wide[r], 2)
            if isvalu:
                for r in P(x.dppsrc):
                    if r in w_valu:
                        req(w_valu[r], 2)
                if x.kind == "valu":
                    for r in rv:
                        if r in w_trans:
                            req(w_trans[r], 1)
                if x.op.startswith("v_read"):
                    for r in rv:
                        if r in w_valu:
                            req(w_valu[r], 1)
                for s in x.rs:
                    if s in w_sv:
                        req(w_sv[s], 2)
            if x.kind in ("vml", "vms", "dma"):
                for s in x.rs:
                    if s in w_sv:
                        req(w_sv[s], 5)
            if x.kind in ("salu", "smem"):
                for s in x.rs:
                    if s in w_sv:
                        req(w_sv[s], 2)
            if x.kind == "dma" or "m0" in x.rs:
                req(w_m0[0], 1)
        if need > 0:
            nn += need
            while need > 0:
                k = min(need, 16)
                emit(f"s_nop {k - 1}", k)
                need -= k
        me = pos
        emit(x.text())
        if isvalu:
            for r in wv:
                w_valu[r] = me
                w_trans.pop(r, None)
                w_mfma.pop(r, None)
                if x.kind == "trans":
                    w_trans[r] = me
            for s in x.ws:
                w_sv[s] = me
        elif x.kind == "mfma":
            nm[0] += 1
            for r in wv:
                w_mfma[r] = (me, x.passes, set(wv))
                w_valu.pop(r, None)
            for r in P(x.srcc):
                r_srcc[r] = (me, x.passes)
        elif x.kind == "salu":
            for s in x.ws:
                w_sv.pop(s, None)
                if s == "m0":
                    w_m0[0] = me
        elif x.kind == "smem":
            smem_pend |= set(x.ws)
        elif x.kind == "dsw" and cond:
            pass
        elif x.kind in ("dsr", "dsw"):
            assert not cond
            lds_q.append(set(wv))
            lds_t.append(nm[0])
            for r in wv:
                w_valu.pop(r, None)
                w_mfma.pop(r, None)
        elif x.kind in ("vml", "vms", "dma"):
            vm_q.append((set(wv), x.tag))
            for r in wv:
                w_valu.pop(r, None)
                w_mfma.pop(r, None)
            for r in P(x.wide):
                wide[r] = me
    if stats is not None:
        stats["nops"] = nn
        stats["n"] = len(out)
    return out


class Chain:
    def __init__(self, items, start=0, prio=0, after=(), lag=0, name="", due=None):
        self.due = due
        self.items = [x if isinstance(x, list) else [x] for x in items if x != []]
        self.start, self.prio, self.after, self.lag, self.name = start, prio, list(after), lag, name
        self.k = 0
        self.done = None if self.items else -99


def schedule(back, chains, lat_ds=6, lat_mfma=3, nvalu=2, nlds=2, ntot=4, log=None):
    prod = {}
    out = []
    credit = 0.0

    def key(r):
        return (r[0].id, r[1])

    def ready_slot(ins):
        t = -99
        dp = {key(r) for r in ins.dppsrc}
        for r in ins.rv + ins.wv:
            p = prod.get(key(r))
            if p is None:
                continue
            s, kind = p
            if kind == "dsr":
                t = max(t, s + lat_ds)
            elif kind == "mfma" and not (ins.kind == "mfma" and key(r) in {key(q) for q in ins.srcc}):
                t = max(t, s + lat_mfma)
            elif kind in ("valu", "trans") and (key(r) in dp or ins.kind == "mfma"):
                t = max(t, s + 1)
        return t

    def note(ins, s):
        for r in ins.wv:
            prod[key(r)] = (s, ins.kind)

    def length(c):
        t = 0
        seen = set()
        for it in c.items:
            if any(key(r) in seen for x in it for r in x.rv):
                t += lat_ds
                seen = set()
            for x in it:
                if x.kind in ("dsr", "mfma"):
                    seen |= {key(r) for r in x.wv}
            t += 0.8
        return t
    for c in chains:
        c.prio = (c.due if c.due is not None else len(back) + 4) - length(c)
    for _ in range(len(chains)):
        ch = False
        for c in chains:
            for a in c.after:
                p = c.prio - c.lag - length(a)
                if p < a.prio:
                    a.prio, ch = p, True
        if not ch:
            break
    bychain = {key(r) for c in chains for it in c.items for x in it for r in x.wv}
    s = 0
    n = len(back)
    while s < n or any(c.done is None for c in chains):
        if s < n:
            b = back[s]
            rs = ready_slot(b)
            late = [r[0].name for r in b.rv if key(r) in bychain and key(r) not in prod]
            assert not late, f"slot {s}: operand {late[0]} not loaded yet"
            if rs > s and log is not None:
                log.append(f"slot {s}: backbone short by {rs - s}")
            out.append(b)
            note(b, s)
            credit = min(credit + nvalu, max(2, nvalu + 0.5))
            nl, nt = nlds, ntot
        else:
            credit, nl, nt = 99, 99, 99
        progress = True
        while progress and nt > 0:
            progress = False
            for c in sorted((c for c in chains if c.done is None), key=lambda c: c.prio):
                if c.start > s and s < n:
                    continue
                if any(a.done is None or (a.done + c.lag > s and s < n) for a in c.after):
                    continue
                it = c.items[c.k]
                if s < n and max(ready_slot(x) for x in it) > s:
                    continue
                v = sum({"valu": 1, "trans": 2, "mfma": 2}.get(x.kind, 0) for x in it)
                l = sum(x.kind in ("dsr", "dsw") for x in it)
                if (v and credit < min(v, 2)) or (l and nl < min(l, nlds)):
                    continue
                out += it
                for x in it:
                    note(x, s)
                credit -= v
                nl -= l
                nt -= max(1, sum(x.kind not in ("salu", "waitvm", "waitds") for x in it))
                c.k += 1
                if c.k == len(c.items):
                    c.done = s
                progress = True
                break
        s += 1
        assert s < n + 1000, [c.name for c in chains if c.done is None]
    if log is not None:
        log.append("done: " + " ".join(f"{c.name}@{c.done}" for c in chains if c.name))
    return out
```

```python
import sys, os
from asmlib import *

NAME = "concat_heads__ssm_conv_s4__ssm_conv_h3__prompt"
ROW = 1152
OROW = 2304
NB, NA = 72, 144
KSTR, USTR = 4288, 4256
KPAD, UPAD = 96, 160
SHR = "wave_shr:1 row_mask:0xf bank_mask:0xf"
SHR0 = "wave_shr:1 row_mask:0xf bank_mask:0xf bound_ctrl:0"
ROR = "wave_ror:1 row_mask:0x1 bank_mask:0x1"
v0 = VR("v0", fixed=0)
STAMP = int(os.environ.get("STAMP", "0"))
NST = 21
SPIN = 's100' if STAMP else 's63'
E = os.environ.get
PFNT = "nt" if int(E("PFNT", "0")) else ""
KNT = "nt" if int(E("KNT", "1")) else ""
STNT = "nt" if int(E("STNT", "0")) else ""
NP = int(E("NP", "40"))
EAG = int(E('EAG', '4'))
PF2 = int(E('PF2', '0'))
ORD = int(E('ORD', '0'))
P8 = int(E('P8', '1'))
KP = int(E('KP', '0'))
KW = int(E('KW', '1'))
PFA = int(E("PFA", "1"))
HO = int(E("HO", "0"))
HOU, HOQ = HO & 1, HO & 2
AL = int(E("AL", "1"))
NT_ = 36


_st = [0]


def stamp(k=None):
    if not STAMP:
        return []
    if k == 0:
        _st[0] = 3
        return [raw("s_memrealtime s[56:57]"), raw("s_memtime s[60:61]")]
    n = _st[0]
    _st[0] += 1
    assert n < NST, n
    return [raw(f"s_memtime s[{56 + 2 * n}:{57 + 2 * n}]")]


def stamp_out():
    if not STAMP:
        return []
    a, d = VR("sa"), VR("sd", 2)
    o = [raw("s_waitcnt vmcnt(0)")] + stamp() + [raw("s_memrealtime s[58:59]")]
    o += [smem("s_load_dwordx2", "s[52:53]", "s[0:1]", 136), salu("s_lshl_b32", "s54", "s2", 3), salu("s_add_u32", "s54", "s54", "s3"),
          salu("s_lshl_b32", "s54", "s54", 8), salu("s_add_u32", "s54", "s54", 8 << 20), valu("v_mov_b32", a, "s54"), waitds(), salu("s_mov_b64", "exec", 1)]
    for k in list(range(NST)) + [22]:
        if k == 22:
            o += [raw("s_getreg_b32 s54, hwreg(HW_REG_HW_ID)"), valu("v_mov_b32", d[0], "s54"), valu("v_mov_b32", d[1], 0)]
        elif k >= _st[0]:
            o += [valu("v_mov_b32", d[0], "s60"), valu("v_mov_b32", d[1], "s61")]
        else:
            o += [valu("v_mov_b32", d[0], f"s{56 + 2 * k}"), valu("v_mov_b32", d[1], f"s{57 + 2 * k}")]
        o += [Ins("global_store_dwordx2", [a, d, "s[52:53]"], "vms", [], [a, d, "s[52:53]"], f"offset:{8 * k}")]
    return o


PRIO = [float(x) for x in E("PRIO", "0,0.25,0.5,0.75").split(",")] if E("PRIO", "1") != "0" else []


def add_prio(ins, SEG=int(E("SEG", "0"))):
    if not PRIO:
        return ins
    if SEG:
        out, n, k = [raw("s_setprio 3")], 0, 0
        for x in ins:
            out.append(x)
            n += {"mfma": 2, "valu": 1, "trans": 2}.get(x.kind, 0.5)
            if n >= SEG and x.kind in ("mfma", "valu") and x.op != "v_cmp_ne_u32":
                n, k = 0, k + 1
                out.append(raw(f"s_setprio {3 - k % 4}"))
        return out
    out, seg = [], []
    segs = []
    for x in ins:
        seg.append(x)
        if x.kind in ("bar", "sync"):
            segs.append(seg)
            seg = []
    segs.append(seg)
    cost = lambda x: {"mfma": 2, "valu": 1, "trans": 2}.get(x.kind, 0.5)
    for sg in segs:
        tot = sum(cost(x) for x in sg)
        if not any(x.kind in ("bar", "sync") for x in sg) or tot < 60:
            out += sg
            continue
        acc, k = 0, 0
        inexec = False
        for x in sg:
            if k < 4 and acc >= PRIO[k] * tot:
                out.append(raw(f"s_setprio {3 - k}"))
                k += 1
            out.append(x)
            acc += cost(x)
    return out


class Flags:
    tails = []
    nlab = 0

    def __init__(s, o, lane, base):
        s.aw, s.ar, s.one = VR("faw"), VR("far"), VR("fone")
        z, t = VR("fz"), VR("ft")
        o += [valu("v_mov_b32", z, 0), valu("v_lshlrev_b32", t, 2, lane),
              valu("v_and_b32", s.ar, 28, t), valu("v_add_u32", s.ar, base, s.ar),
              valu("v_add_u32", t, base, t), dsw("ds_write_b32", t, z),
              salu("s_lshl_b32", "s47", "s3", 2), salu("s_add_u32", "s47", "s47", base),
              valu("v_mov_b32", s.aw, "s47"), valu("v_mov_b32", s.one, 1)]

    def arrive(s, e):
        return [dsw("ds_write_b32", s.aw, s.one, 32 * e)]

    def check(s, e):
        f = VR("fv")
        Flags.nlab += 1
        lab = f"L_f{Flags.nlab}"
        rd = dsr("ds_read_b32", f, s.ar, 32 * e)
        cmp_ = Ins("v_cmp_ne_u32", ["vcc", 1, f], "valu", ["vcc"], [f])
        br = Ins(f"s_cbranch_vccnz {lab}r\n{lab}:", [], "sync", [], [s.ar])
        Flags.tails.append((lab, rd, cmp_))
        return [rd, [cmp_, br]]

    @staticmethod
    def tail_code():
        L = []
        for lab, rd, cmp_ in Flags.tails:
            L += [f"{lab}r:", "s_sleep 16" if rd.kind == "vml" else "s_sleep 1", rd.text(), "s_waitcnt vmcnt(0) lgkmcnt(0)" if rd.kind == "vml" else "s_waitcnt lgkmcnt(0)", cmp_.text()]
            L += [f"s_add_u32 {SPIN}, {SPIN}, 1", f"s_cmp_gt_u32 {SPIN}, 0x40000", f"s_cbranch_scc1 {lab}"]
            L += ["s_nop 0", f"s_cbranch_vccnz {lab}r", f"s_branch {lab}"]
        return L


class Poll:
    def __init__(s, base, off):
        s.base, s.off = base, off
        s.v, s.z = VR("pv"), VR("pz")

    def load(s):
        return [valu("v_mov_b32", s.z, 0),
                Ins("global_load_dword", [s.v, s.z, s.base], "vml", [s.v], [s.z, s.base], f"offset:{s.off} sc1")]

    def check(s):
        Flags.nlab += 1
        lab = f"L_f{Flags.nlab}"
        ld = s.load()[1]
        cmp_ = Ins("v_cmp_gt_u32", ["vcc", NT_, s.v], "valu", ["vcc"], [s.v])
        br = Ins(f"s_cbranch_vccnz {lab}r\n{lab}:", [], "other", [], [s.z, s.v])
        Flags.tails.append((lab, ld, cmp_))
        return [cmp_, br]


def lane_fields(o):
    lane, g, r, c = VR("lane"), VR("g"), VR("r"), VR("c")
    o += [valu("v_and_b32", lane, 63, v0), valu("v_bfe_u32", g, v0, 4, 2),
          valu("v_bfe_u32", r, v0, 2, 2), valu("v_and_b32", c, 3, v0)]
    return lane, g, r, c


def fg_addr(o, g, r, c, s_k, s_u):
    vF, vG, t = VR("vF"), VR("vG"), VR("t")
    o += [valu("v_lshlrev_b32", t, 2, g), valu("v_add_u32", t, t, r),
          valu("v_lshlrev_b32", vF, 2, c), valu("v_sub_u32", vF, vF, t),
          valu("v_lshlrev_b32", vF, 3, vF), valu("v_add_u32", vF, KPAD - 128 + 152, vF),
          valu("v_add_u32", vF, s_k, vF),
          valu("v_add_u32", vG, t, c), valu("v_lshlrev_b32", vG, 3, vG),
          valu("v_add_u32", vG, UPAD - 152, vG), valu("v_add_u32", vG, s_u, vG)]
    return vF, vG


class Conv:
    def __init__(s, vF, vG):
        s.vF, s.vG = vF, vG
        s.F, s.G, s.P, s.acc, s.prev, s.y = {}, {}, {}, {}, None, {}

    def loadF(s, l):
        s.F[l] = f = VR(f"F{l}", 4)
        return [dsr("ds_read_b64_tr_b16", f[0:2], s.vF, 256 * l + 128), dsr("ds_read_b64_tr_b16", f[2:4], s.vF, 256 * l)]

    NCH = 8

    def pairs(s, i):
        return [(i // s.NCH, i % s.NCH), (i // s.NCH, i % s.NCH + 1)]

    def loadP(s, c, k):
        if c not in s.P:
            s.P[c] = VR(f"G{c}", 2 * s.NCH + 2)
            for q in range(s.NCH):
                s.G[s.NCH * c + q] = s.P[c][2 * q:2 * q + 4]
        return [dsr("ds_read_b64_tr_b16", s.P[c][2 * k:2 * k + 2], s.vG, 128 * (s.NCH * c + k))]

    def need_pairs(s, order):
        need = {}
        for k, (j, i) in enumerate(order):
            for p in s.pairs(i):
                need.setdefault(p, k)
        return need

    def mm(s, j, i):
        assert (j - i) % 2 == 0 and i <= j
        if j not in s.acc:
            s.acc[j] = VR(f"acc{j}", 4)
            return mfma16(s.acc[j], s.F[(j - i) // 2], s.G[i], 0)
        return mfma16(s.acc[j], s.F[(j - i) // 2], s.G[i], s.acc[j])

    def horner(s, j, final=True):
        a = s.acc[j]
        S2, S1, y = VR(f"S2_{j}"), VR(f"S1_{j}"), VR(f"y{j}")
        o = []
        if s.prev is None:
            o += [dpp("v_add_f32", S2, a[3], a[2], SHR0), dpp("v_add_f32", S1, S2, a[1], SHR0)]
            if final:
                o += [dpp("v_add_f32", y, S1, a[0], SHR0)]
        else:
            p3, p2, p1 = s.prev
            o += [dpp("v_add_f32", S2, p3, a[2], ROR), dpp("v_add_f32", S1, p2, a[1], ROR),
                  dpp("v_add_f32", S2, a[3], a[2], SHR), dpp("v_add_f32", y, p1, a[0], ROR),
                  dpp("v_add_f32", S1, S2, a[1], SHR), dpp("v_add_f32", y, S1, a[0], SHR)]
        s.prev = (a[3], S2, S1)
        s.y[j] = y
        return o


def horner2(cv, j):
    a, b = cv.horner(j), cv.horner(j + 1)
    if len(a) == 3:
        return [a[0], b[0], a[1], b[2], b[1], a[2], b[4], b[3], b[5]]
    return [a[0], a[1], a[2], a[3], b[0], a[4], b[2], b[1], a[5], b[4], b[3], b[5]]


KKS = 4128
B_KT, B_U = 0, 8 * KSTR
B_KK = B_U + 8 * USTR
B_RAW = B_KK + 8 * KKS
B_FL = B_RAW + 6 * 8192
B_END = B_FL + 256


ROT = int(E("ROT", "0"))
QS = int(E("QS", "0"))
FAKE = int(E("FAKE", "0"))
FAKEQ, FAKEU = FAKE & 1, FAKE & 2


BS = int(E("BS", "0"))


def gen_B(part="full"):
    o = stamp(0)
    nrows = 64 * BS if part == "lo" else 2048
    nlev = BS // 2 if part == "lo" else 16
    sK, sk, sv, sq, so = "s[8:11]", "s[12:15]", "s[16:19]", "s[20:23]", "s[24:27]"
    o += [smem("s_load_dwordx2", "s[8:9]", "s[0:1]", 104), smem("s_load_dwordx2", "s[12:13]", "s[0:1]", 80),
          smem("s_load_dwordx2", "s[16:17]", "s[0:1]", 88), smem("s_load_dwordx2", "s[28:29]", "s[0:1]", 96),
          smem("s_load_dwordx2", "s[20:21]", "s[0:1]", 72), smem("s_load_dwordx2", "s[32:33]", "s[0:1]", 112),
          smem("s_load_dwordx2", "s[24:25]", "s[0:1]", 120)]
    lane, l16 = VR("lane"), VR("l16")
    o += [salu("s_lshl_b32", "s36", "s35", 3), salu("s_lshl_b32", "s35", "s35", 1), salu("s_add_u32", "s35", "s35", 56),
          salu("s_cmp_lt_u32", None, "s34", 8), salu("s_cselect_b32", "s35", "s36", "s35"),
          salu("s_add_u32", "s34", "s34", "s35"), salu("s_lshl_b32", "s36", "s34", 3), salu("s_add_u32", "s36", "s36", "s3"),
          salu("s_lshl_b32", "s37", "s36", 12),
          salu("s_mul_i32", "s38", "s3", KSTR),
          salu("s_add_u32", "m0", "s38", KPAD), salu("s_mov_b32", "s10", 2359296), salu("s_mov_b32", "s11", 0x20000),
          valu("v_and_b32", lane, 63, v0), valu("v_lshlrev_b32", l16, 4, lane)]
    KS = 4
    for m in range(-(-nlev // 4)):
        o.append(dma("buffer_load_dwordx4", l16, sK, "s37", 1024 * m, tag="K", fl=KNT))
    o += [raw("@@EARLY")]
    for b, n in ((12, nrows * ROW), (16, nrows * ROW), (20, nrows * ROW), (24, 4718592)):
        o += [salu("s_mov_b32", f"s{b + 2}", n), salu("s_mov_b32", f"s{b + 3}", 0x20000)]
    o += [salu("s_lshl_b32", "s35", "s34", 4),
          salu("s_mul_i32", "s39", "s3", USTR), salu("s_add_u32", "s39", "s39", B_U),
          salu("s_lshl_b32", "s40", "s3", 10), salu("s_add_u32", "s40", "s40", B_RAW),
          salu("s_mov_b32", "s55", "s3"),
          salu("s_mul_i32", "s41", "s55", 64 * ROW),
          salu("s_mul_i32", "s42", "s3", KKS), salu("s_add_u32", "s42", "s42", B_KK),
          salu("s_lshl_b32", "s43", "s36", 1), salu("s_and_b32", "s44", "s43", -4), salu("s_lshl_b32", "s49", "s36", 3)]
    g, r, c = VR("g"), VR("r"), VR("c")
    o += [valu("v_bfe_u32", g, v0, 4, 2), valu("v_bfe_u32", r, v0, 2, 2), valu("v_and_b32", c, 3, v0)]
    vRaw, h, t = VR("vRaw"), VR("h"), VR("t")
    o += [valu("v_and_b32", vRaw, 0x23, lane), valu("v_lshl_add_u32", vRaw, r, 3, vRaw),
          valu("v_and_b32", h, 1, g), valu("v_lshl_add_u32", vRaw, h, 2, vRaw),
          valu("v_mul_u32_u24", vRaw, ROW, vRaw), valu("v_add_u32", vRaw, "s35", vRaw)]
    SPF = 0
    o += [smem("s_load_dword", "s45", "s[32:33]", "s44"), smem("s_load_dword", "s46", "s[8:9]", "s37"),
          smem("s_load_dwordx2", "s[30:31]", "s[28:29]", "s49")]
    o += [salu("s_cmp_lt_u32", None, "s3", 4), salu("s_cselect_b64", "s[4:5]", "s[12:13]", "s[16:17]"),
          salu("s_mov_b32", "s6", 2359296), salu("s_mov_b32", "s7", 0x20000),
          salu("s_mov_b32", "s54", USTR), salu("s_cselect_b32", "s54", KKS, "s54"),
          salu("s_mov_b32", "s53", B_U + UPAD - 512), salu("s_cselect_b32", "s53", B_KK + 32, "s53"),
          salu("s_and_b32", "s52", "s3", 3), salu("s_mul_i32", "s52", "s52", 64 * ROW)]
    if int(E("KBAR", "1")):
        o += [barrier()]

    qa_ = []

    def row_dma(a, step):
        srd, base = {"k": (sk, 0), "v": (sv, 2), "q": (sq, 4)}[a]
        return [salu("s_add_u32", "m0", "s40", (base + (step & 1)) * 8192),
                salu("s_add_u32", "s47", "s34" if a == "q" else "s41", step * 512 * ROW),
                *([salu("s_cmp_lt_u32", None, "s3", BS % 8), salu("s_cselect_b32", "s47", 2048 * ROW, "s47")]
                  if part == "hi" and a == "q" and step == BS // 8 else []),
                dma("buffer_load_dwordx4", qa_[0] if a == "q" else vRaw, srd, "s47", 0, tag=f"{a}{step}")]

    def half_dma(b_):
        return [salu("s_add_u32", "m0", "s40", 2 * b_ * 8192), salu("s_add_u32", "s47", "s52", 256 * b_ * ROW),
                dma("buffer_load_dwordx4", vRaw, "s[4:7]", "s47", 0, tag=f"h{b_}")]

    o += half_dma(0)
    klate = []
    if KS < 4:
        klate = [salu("s_add_u32", "m0", "s38", KPAD)]
        klate += [dma("buffer_load_dwordx4", l16, sK, "s37", 1024 * m, tag=f"K{m}") for m in range(KS, 4)]
    klate += half_dma(1)
    if KS == 4:
        o, klate = o + klate, []
    kv1 = row_dma("k", 1) + row_dma("v", 1)
    vF, vG = fg_addr(o, g, r, c, "s38", "s39")
    vTr, vUw, vKw, vQw, vYw, vYr, vOut, vKr, vVr, z = (VR(n) for n in "vTr vUw vKw vQw vYw vYr vOut vKr vVr z".split())
    tau, ch, row, vHw = VR("tau"), VR("ch"), VR("row"), VR("vHw")
    o += [valu("v_lshrrev_b32", tau, 1, g),
          valu("v_lshl_add_u32", vTr, c, 2, r), valu("v_lshl_add_u32", vTr, tau, 5, vTr),
          valu("v_lshlrev_b32", vTr, 4, vTr), valu("v_lshl_add_u32", vTr, h, 3, vTr),
          valu("v_add_u32", vTr, "s40", vTr),
          valu("v_lshl_add_u32", ch, h, 2, c),
          valu("v_lshl_add_u32", t, tau, 2, r), valu("v_lshlrev_b32", t, 4, t),
          salu("s_lshl_b32", "s47", "s3", 7), valu("v_mul_u32_u24", vHw, "s54", ch), valu("v_add_u32", vHw, vHw, t),
          salu("s_add_u32", "s53", "s53", "s47"), valu("v_add_u32", vHw, "s53", vHw),
          salu("s_lshl_b32", "s47", "s55", 7), valu("v_add_u32", t, "s47", t),
          valu("v_mul_u32_u24", vUw, USTR, ch), valu("v_add_u32", vUw, vUw, t), valu("v_add_u32", vUw, B_U + UPAD, vUw),
          valu("v_mul_u32_u24", vKw, KKS, ch), valu("v_add_u32", vKw, vKw, t), valu("v_add_u32", vKw, B_KK + 32, vKw),
          valu("v_mul_u32_u24", vQw, KSTR, ch), valu("v_add_u32", vQw, vQw, t),
          valu("v_lshl_add_u32", vYw, lane, 2, "s38"),
          valu("v_mul_u32_u24", vYr, KSTR, r), valu("v_lshl_add_u32", vYr, g, 5, vYr),
          valu("v_lshl_add_u32", vYr, c, 3, vYr),
          valu("v_and_b32", row, 15, lane), valu("v_lshlrev_b32", t, 5, row),
          valu("v_lshl_add_u32", vKr, g, 4, t), valu("v_add_u32", vKr, "s42", vKr),
          valu("v_lshl_add_u32", vVr, g, 3, t), salu("s_add_u32", "s47", "s39", UPAD), valu("v_add_u32", vVr, "s47", vVr)]
    o += [salu("s_add_u32", "s47", "s35", ROW)]
    vQs = VR("vQs")
    out_rows(o, vOut, g, r, c, "s47", vQs if QS else None, "s35")
    vRawQ = VR("vRawQ")
    o += [valu("v_lshlrev_b32", vRawQ, 4, tau), valu("v_lshl_add_u32", vRawQ, r, 2, vRawQ), valu("v_lshl_add_u32", vRawQ, h, 1, vRawQ),
          valu("v_lshrrev_b32", t, 1, c), valu("v_add_u32", vRawQ, vRawQ, t), valu("v_and_b32", t, 1, c),
          valu("v_lshl_add_u32", vRawQ, t, 6, vRawQ), valu("v_mul_u32_u24", vRawQ, ROW, vRawQ), valu("v_add_u32", vRawQ, "s35", vRawQ),
          salu("s_lshr_b32", "s47", "s55", 1), salu("s_lshl_b32", "s47", "s47", 2), salu("s_and_b32", "s48", "s55", 1),
          salu("s_add_u32", "s47", "s47", "s48"), salu("s_mul_i32", "s34", "s47", 32 * ROW)]
    qa_.append(vRawQ)
    vYr = store_bases(o, vYr, (8, 4, 2) if part != "full" or ":2" in E("FINF", "") else (8, 4), ("s36", "s35", "s44"))
    zu, zk, zx = VR("zu"), VR("zk"), VR("zx")
    o += [valu("v_mov_b32", z, 0), valu("v_lshlrev_b32", t, 2, lane),
          valu("v_add_u32", zu, "s39", t), valu("v_add_u32", zk, "s38", t), valu("v_add_u32", zx, "s42", t),
          salu("s_mov_b64", "exec", 255), dsw("ds_write_b32", zx, z),
          salu("s_mov_b64", "exec", (1 << 24) - 1), dsw("ds_write_b32", zk, z),
          salu("s_mov_b32", "exec_lo", -1), salu("s_mov_b32", "exec_hi", 255), dsw("ds_write_b32", zu, z),
          salu("s_mov_b64", "exec", -1)]
    fl = Flags(o, lane, B_FL)
    T, sh, nsh, La, Ra = VR("T", 4), VR("sh"), VR("nsh"), VR("La", 2), VR("Ra", 2)
    o += [salu("s_lshr_b32", "s47", "s31", 16), salu("s_lshl_b32", "s48", "s31", 16), salu("s_or_b32", "s50", "s47", "s48"),
          salu("s_lshr_b32", "s47", "s30", 16), salu("s_lshl_b32", "s48", "s30", 16), salu("s_or_b32", "s51", "s47", "s48"),
          valu("v_lshlrev_b32", sh, 3, g), valu("v_sub_u32", sh, row, sh), valu("v_lshlrev_b32", sh, 4, sh)]
    for hh in range(2):
        x, nx = VR("x"), VR("nx")
        o += [valu("v_add_u32", x, 13 * 16 - 64 * hh, sh), valu("v_sub_u32", nx, 0, x),
              valu("v_lshlrev_b64", La, x, "s[50:51]"), valu("v_lshrrev_b64", Ra, nx, "s[50:51]"),
              Ins("v_cmp_gt_u32", ["s[52:53]", 64, x], "valu", ["s[52:53]"], [x]),
              Ins("v_cmp_gt_u32", ["s[54:55]", 64, nx], "valu", ["s[54:55]"], [nx])]
        for k in range(2):
            o += [valu("v_cndmask_b32", T[2 * hh + k], 0, Ra[k], "s[54:55]")]
        for k in range(2):
            o += [valu("v_cndmask_b32", T[2 * hh + k], T[2 * hh + k], La[k], "s[52:53]")]
    if HOQ:
        o += [smem("s_load_dwordx2", "s[28:29]", "s[0:1]", 128)]
    kd, ka = VR("kd"), VR("ka")
    o += [salu("s_and_b32", "s43", "s43", 2), salu("s_lshl_b32", "s43", "s43", 3), salu("s_lshr_b32", "s45", "s45", "s43"),
          salu("s_lshl_b32", "s45", "s45", 16), salu("s_lshl_b32", "s46", "s46", 16),
          valu("v_mov_b32", kd, "s45"), valu("v_add_f32", kd, "s46", kd), valu("v_cvt_pk_bf16_f32", kd, kd, kd),
          valu("v_mov_b32", ka, "s38"),
          *(stamp() if STAMP == 1 else []), waitvm("K"), *(stamp() if STAMP == 1 else []), dsw("ds_write_b16", ka, kd, KPAD)] + ([valu("v_mov_b32", dummy, dummy)] if SPF else [])
    cv = Conv(vF, vG)
    lateF = {}
    for l in range(nlev):
        if l < 4 * KS:
            o += cv.loadF(l)
        else:
            lateF[l] = cv.loadF(l)

    def transp(a, step):
        base, dst = {"k": (0, vKw), "v": (2, vUw), "q": (4, vQw)}[a]
        so_ = (base + (step & 1)) * 8192
        d = VR("tr", 4)
        return ([waitvm(f"{a}{step}"), dsr("ds_read_b64_tr_b16", d[0:2], vTr, so_), dsr("ds_read_b64_tr_b16", d[2:4], vTr, so_ + 256)],
                [dsw("ds_write_b128", dst, d, 1024 * step)])

    def kv(q):
        kb, vb, d, u_, p = VR("kb", 4), VR("vb", 2), VR("ks", 4), [VR("vu") for _ in range(4)], VR("kvp", 2)
        rd = [dsr("ds_read_b128", kb, vKr, 512 * q), dsr("ds_read_b64", vb, vVr, 512 * q)]
        mm = [mfma16(d, T, kb, 0)]
        un = [valu("v_lshlrev_b32", u_[0], 16, vb[0]), valu("v_and_b32", u_[1], 0xFFFF0000, vb[0]),
              valu("v_lshlrev_b32", u_[2], 16, vb[1]), valu("v_and_b32", u_[3], 0xFFFF0000, vb[1])]
        x = [valu("v_mul_f32", u_[i], u_[i], d[i]) for i in range(4)]
        x += [valu("v_cvt_pk_bf16_f32", p[0], u_[0], u_[1]), valu("v_cvt_pk_bf16_f32", p[1], u_[2], u_[3]),
              dsw("ds_write_b64", vVr, p, 512 * q)]
        return rd, mm, un, x

    def transp_half(b_):
        d = VR("tr", 4)
        return ([waitvm(f"h{b_}"), dsr("ds_read_b64_tr_b16", d[0:2], vTr, 2 * b_ * 8192),
                 dsr("ds_read_b64_tr_b16", d[2:4], vTr, 2 * b_ * 8192 + 256)], [dsw("ds_write_b128", vHw, d, 512 * b_)])

    a0, a1 = transp_half(0)
    o += a0[:1] + (stamp() if STAMP != 4 else []) + a0[1:] + (kv1 if KS == 4 else []) + a1 + klate + [waitds()] + stamp() + [barrier()]
    rd, mm, un, x = kv(0)
    o += rd + (kv1 if KS < 4 else []) + mm + un + x
    o += cv.loadP(0, 0) + cv.loadP(0, 1) + cv.loadP(0, 2)

    def gate(j):
        qa, qb, pk = VR("qa"), VR("qb"), VR("pk")
        rds = [dsr("ds_read_u16_d16_hi", qa, vYw, 128 * j), dsr("ds_read_u16_d16_hi", qb, vYw, 128 * j + 2)]
        x = []
        if int(E("QB32", "1")):
            rds = [dsr("ds_read_b32", qb, vYw, 128 * j)]
            x = [valu("v_lshlrev_b32", qa, 16, qb), valu("v_and_b32", qb, 0xFFFF0000, qb)]
        x += [valu("v_mul_f32", qa, qa, cv.y[j]), valu("v_mul_f32", qb, qb, cv.y[j + 1]),
             [salu("s_mov_b32", "m0", "s38"), valu("v_cvt_pk_bf16_f32", pk, qa, qb), addtid(pk, 128 * j)]]
        return rds, x

    def store(t0, nt):
        x, st = row_store(t0, nt, vYr, 4 * KSTR, vOut, so, fl=E("STB", "").replace("_", " ") if t0 < int(E("STBN", "16")) else "")
        if not QS:
            return x, st
        d = [i_ for i_ in st if i_.kind == "vms"][0].ops[0]
        qd = qreg[t0]
        for k in range(4):
            a, b, c_, e = VR("ga"), VR("gb"), VR("gc"), VR("ge")
            x += [valu("v_lshlrev_b32", b, 16, qd[k]), valu("v_and_b32", e, 0xFFFF0000, qd[k]),
                  valu("v_lshlrev_b32", a, 16, d[k]), valu("v_and_b32", c_, 0xFFFF0000, d[k]),
                  valu("v_mul_f32", a, a, b), valu("v_mul_f32", c_, c_, e), valu("v_cvt_pk_bf16_f32", d[k], a, c_)]
        return x, st

    qreg = {}

    def qload(t0, nt):
        rows = nt * 8
        qreg[t0] = VR("qd", 4)
        x = [salu("s_mul_i32", "s50", "s3", rows * 2), salu("s_and_b32", "s51", "s50", 255), salu("s_lshr_b32", "s51", "s51", 2),
             salu("s_lshr_b32", "s50", "s50", 8), salu("s_lshl_b32", "s50", "s50", 7), salu("s_add_u32", "s50", "s50", "s51"),
             salu("s_add_u32", "s50", "s50", 64 * t0), salu("s_mul_i32", "s50", "s50", ROW)]
        ld = [bufld("buffer_load_dwordx4", qreg[t0], vQs, sq, "s50")]
        return x + (exec_rows(rows) + ld + [salu("s_mov_b64", "exec", -1)] if rows < 64 else ld)

    if part == "lo":
        order = [(2 * J + p, 2 * I + p) for I in range(BS // 2) for J in range(I, BS // 2) for p in (0, 1)]
    elif part == "hi":
        J0 = BS // 2
        js = [BS - 1] + list(range(BS, 32))
        order = [(j, 2 * I + j % 2) for I in range(4) for j in js]
        order += [(j, 2 * I + j % 2) for I in range(4, 8) for j in js if j // 2 <= min(J0, 7) and I <= j // 2]
        order += [(j, 2 * I + j % 2) for I in range(4, 8) for j in js if j // 2 - I >= 8]
        for J in range(J0, 16):
            x = [(2 * J + p, 2 * I + p) for I in range(J + 1) for p in (0, 1)]
            if J == 15:
                x.sort(key=lambda z: z[0])
            order += [y for y in x if y not in order]
        assert len(set(order)) == len(order) == sum(j // 2 + 1 for j in js)
    else:
        P1 = int(E("P1", "2"))
        order, first = [], {}
        for n in range(16):
            first[n] = len(order)
            RR = dict(zip(range(15, -1, -1), [int(x) for x in E("RR", "7").split(",")] + [(16 - P1) // 2] * 16))
            if n < P1:
                tasks = [(J, n) for J in range(n, 16)]
            else:
                tasks = [(n, I) for I in range(max(P1, n - RR[n] + 1), n + 1)] + [(J, n) for J in range(15, n, -1) if n <= J - RR[J]]
            if n == 15:
                order += [(2 * J + p, 2 * I + p) for p in (0, 1) for J, I in tasks]
                continue
            order += [(2 * J + p, 2 * I + p) for J, I in tasks if I < n for p in (0, 1)]
            order += [(2 * J + p, 2 * I + p) for J, I in tasks if I == n for p in (0, 1)]
        first[16] = len(order)
        assert len(set(order)) == len(order) == 272
    needP = {p: k for p, k in cv.need_pairs(order).items() if p > (0, 2)}
    gl_ = {p: cv.loadP(*p) for p in needP}
    back = [cv.mm(j, i) for j, i in order]
    if STAMP in (1, 2, 3):
        for k in range(17 if STAMP != 2 else 34, len(order) + 1, 17 if STAMP == 2 else 34):
            back[k - 1] = [back[k - 1]] + stamp()
    done = {j: k for k, (j, i) in enumerate(order)}
    need = {}
    for k, (j, i) in enumerate(order):
        need.setdefault(i, k)
    C = []

    def chain(*a, **kw):
        C.append(Chain(*a, **kw))
        return C[-1]

    L_ = lambda name, dflt: [int(x) for x in E(name, dflt).split(",")]
    TL = int(E("TL", "52" if part == "full" else "48"))
    T0 = max(0, min(14, need[4] - TL))
    TK = {st: max(T0 + 6, need[8 * st] - TL - 4 * (st == 3)) for st in (1, 2, 3) if 8 * st in need}
    tiles = sorted(done)
    t_out = [j for j in tiles if not (part == "hi" and j == BS - 1)]
    qs = sorted({j // 8 for j in t_out})
    cfg = {"full": ("q0:10,k2:32,v2:54,q1:76,k3:98,v3:116,q2:134,q3:170", "2,2,3,4", "0:8:6,8:8:3,16:8:4,24:4:5", "28:4"),
           "hi": ("q1:2,k2:14,v2:34,k3:70,v3:88,q2:104,q3:118", "0,1,3,3", f"{BS}:{16 - BS}:3,16:8:4,24:4:5", "28:4"),
           "lo": ("q0:0,q1:6", "2,2,0,0", "", f"0:8,8:4,12:{BS - 12}" if BS > 12 else "0:8,8:4")}[part]
    cfg = [E(n + part[0].upper(), d) for n, d in zip(("DP", "QE", "SG", "FIN"), cfg)]
    DMA = {(x[0], int(x[1])): int(x[3:]) for x in cfg[0].split(",")}
    QE = [int(x) for x in cfg[1].split(",")]
    SG = [tuple(int(y) for y in x.split(":")) for x in cfg[2].split(",") if x]
    FIN = [tuple(int(y) for y in x.split(":")) for x in cfg[3].split(",")]
    TRN = {"h": T0}
    for st, x in TK.items():
        TRN["k", st], TRN["v", st] = x, x + 3
    for m in qs:
        TRN["q", m] = min([TK.get(QE[m], done.get(23, 0) - 10) + 6] + ([DMA["q", m + 2] - 10] if ("q", m + 2) in DMA else []))
    if part == "lo":
        TRN["k", 1], TRN["v", 1] = need[8] - 30, need[8] - 28
        TRN["q", 0], TRN["q", 1] = int(E("TQL", "30")), int(E("TQL", "30")) + 8
    tr = {}
    prev = None
    for a, x in DMA.items():
        prev = chain([(stamp() if STAMP == 4 else []) + row_dma(*a) + (stamp() if STAMP == 4 else [])], start=x, due=x + 4, after=[prev] if prev else [], name=f"d{a[0]}{a[1]}")
        tr["d", a] = prev
    for a, x in TRN.items():
        r_, w_ = transp(*a) if a != "h" else transp_half(1)
        if STAMP == 5 and a in ("h", ("v", 1), ("q", 1), ("v", 2), ("q", 2), ("v", 3), ("q", 3)):
            r_ = stamp() + r_[:1] + stamp() + r_[1:]
        tr[a] = chain([r_] + w_, start=x, after=[tr["d", a]] if ("d", a) in tr else [], name=f"t{a[0]}{a[-1]}")
    tr["v", 0] = tr["h"]
    later = []
    for a in DMA:
        b_ = (a[0], a[1] - 2)
        if b_ in tr:
            tr["d", a].after.append(tr[b_])
    fch = []
    for l, x in lateF.items():
        k = min(k_ for k_, (j_, i_) in enumerate(order) if (j_ - i_) // 2 == l)
        fch.append(chain([[waitvm(f"K{l // 4}")] + x[:1], x[1]], start=max(0, k - int(E("FL", "10"))), due=k - 6, name=f"F{l}"))
    hor, gat = {}, {}
    if part == "hi":
        hor[BS - 1] = chain(cv.horner(BS - 1, final=False), start=done[BS - 1] + 3, due=done[BS - 1] + 30, name="hc")
    for j in t_out[0:-2:2]:
        hor[j] = hor[j + 1] = chain(horner2(cv, j), start=done[j] + 3, due=done[j] + int(E("HD", "30")), after=[hor[j - 1]] if j else [], name=f"h{j}")
    for j in t_out[-2:]:
        hor[j] = chain(cv.horner(j), start=done[j] + 3, due=done[j] + 6, after=[hor[j - 1]], name=f"h{j}")
    nsync = 1 + max([e for _, _, e in SG] + list(TK) + [QE[m] for m in qs])
    SLACK = int(E("SLACK", "5"))
    bars, arr = {}, {}
    for e in range(nsync):
        trs = (["h"] if e == 0 else [("k", e), ("v", e)] if e in TK else []) + [("q", m) for m in qs if QE[m] == e]
        if trs or any(e == x[2] for x in SG):
            arr[e] = chain(fl.arrive(e), after=[tr[a] for a in trs] + (fch if e == 1 else []), name=f"arr{e}")
            ck = fl.check(e)
            if STAMP == 6:
                ck[1] = stamp() + ck[1] + stamp()
            bars[e] = chain(ck, after=[arr[e]], lag=SLACK, name=f"chk{e}")
    if fch:
        for m in qs:
            tr["q", m].after.append(bars[1])
    for j in t_out[::2]:
        a, b_ = gate(j)
        gr = chain(a, start=done[j + 1], after=[bars[QE[j // 8]]])
        gat[j] = chain(b_, after=[gr, hor[j + 1]], due=done[j + 1] + int(E("GD", "40")), name=f"g{j}")
    pst = None
    for t0, nt, e in SG:
        arr[e].after += [gat[j] for j in range(t0, t0 + nt, 2)]
        s1, s2 = store(t0, nt)
        pst = chain(s1 + [s2], due=max(need.get(16, 0) + 10, done[t0 + nt - 1] + 45), after=[bars[e]] + ([pst] if pst else []), name=f"st{t0}")
    kvc = {}
    for q in range(1, (max(tiles) + 4) // 4):
        rd, m1, un, x = kv(q)
        kvc[q] = chain(rd + un + m1 + x, start=need[4 * q] - 40, after=[bars[q // 2]], name=f"kv{q}")
    for p, k in needP.items():
        m = cv.NCH * p[0] + p[1]
        chain(gl_[p], start=max(0, k - 16), due=k - 7, after=[kvc[(m - 1) // 4]] if m > 4 else [], name=f"P{m}")
    log = []
    flat = [b_[0] if isinstance(b_, list) else b_ for b_ in back]
    sch = schedule(flat, C, log=log, nvalu=float(E('NV', '2')) if part != "lo" else 3, nlds=int(E('NL', '2')) if part != "lo" else 3,
                   ntot=int(E('NT', '4')) if part != "lo" else 5, lat_ds=int(E('LD', '5')))
    BX = E("BX", "").split(",")

    def keep(x):
        return not (("dma" in BX and x.kind in ("dma", "vms")) or ("q" in BX and x.op == "ds_read_u16_d16_hi")
                    or ("y" in BX and x.op.startswith("ds_write_addtid")) or ("sync" in BX and x.kind == "sync") or ("prio" in BX and "setprio" in x.op)
                    or ("gtr" in BX and x.op == "ds_read_b64_tr_b16" and x.wv[0][0].name.startswith("G"))
                    or ("kvm" in BX and x.kind == "mfma" and x.wv[0][0].name == "ks") or ("w128" in BX and x.op == "ds_write_b128")
                    or ("hor" in BX and "dpp" in x.op) or ("valu" in BX and x.kind == "valu" and "dpp" not in x.op)
                    or ("bar" in BX and x.kind == "bar") or ("tr" in BX and x.op == "ds_read_b64_tr_b16")
                    or ("dsw" in BX and x.kind == "dsw") or ("salu" in BX and x.kind == "salu"))
    sch = [x for x in sch if keep(x)]
    for b_ in back:
        if isinstance(b_, list):
            k = sch.index(b_[0])
            sch[k + 1:k + 1] = b_[1:]
    o += sch
    if E("LOG"):
        print("\n".join(log), file=sys.stderr)
    o += [raw(f"s_sleep {E('DLYB')}")] if E("DLYB") else []
    o += final_store(*store(*FIN[0]))
    for x in FIN[1:]:
        s1, s2 = store(*x)
        o += [z_ for y_ in s1 for z_ in (y_ if isinstance(y_, list) else [y_])] + s2
    o += stamp() + stamp_out()
    return o


def out_rows(o, vOut, g, r, c, scol, vQ=None, qcol=None):
    t = VR("t")
    o += [valu("v_lshlrev_b32", vOut, 3, g), valu("v_lshl_add_u32", vOut, r, 1, vOut), valu("v_lshrrev_b32", t, 1, c),
          valu("v_add_u32", vOut, vOut, t), valu("v_and_b32", t, 1, c), valu("v_lshl_add_u32", vOut, t, 6, vOut),
          *([valu("v_mul_u32_u24", vQ, ROW, vOut), valu("v_add_u32", vQ, qcol, vQ)] if vQ else []),
          valu("v_mul_u32_u24", vOut, OROW, vOut), valu("v_add_u32", vOut, scol, vOut)]


def store_bases(o, vYr, sizes, sregs_):
    B = {}
    for nt, sr in zip(sizes, sregs_):
        a = VR(f"ya{nt}")
        o += [salu("s_mul_i32", "s49", "s3", nt * 16), valu("v_add_u32", a, "s49", vYr),
              salu("s_and_b32", "s48", "s49", 255), salu("s_lshr_b32", "s48", "s48", 2), salu("s_lshr_b32", "s47", "s49", 8),
              salu("s_lshl_b32", "s47", "s47", 7), salu("s_add_u32", "s48", "s48", "s47"), salu("s_mul_i32", sr, "s48", OROW)]
        B[nt] = (a, sr)
    return B


def row_store(t0, nt, B, hi_off, vOut, srd, skip=None, fl=""):
    assert t0 % 2 == 0 and nt in (2, 4, 8)
    d = VR("od", 4)
    a, sr = B[nt]
    rows = nt * 8
    x = [dsr("ds_read_b64_tr_b16", d[0:2], a, 128 * t0), dsr("ds_read_b64_tr_b16", d[2:4], a, 128 * t0 + hi_off),
         salu("s_add_u32", "s48", sr, 64 * t0 * OROW)]
    st = [bufst("buffer_store_dwordx4", d, vOut, srd, "s48", fl=fl)]
    if skip is not None:
        assert rows <= 32
        full = (1 << rows) - 1
        keep = full & (0xAAAAAAAA if skip % 2 == 0 else 0x55555555)
        w0 = (skip // 2 * 2 - t0) * 8 // nt
        st = [salu("s_sub_u32", "s47", "s3", w0), salu("s_mov_b32", "exec_hi", 0), salu("s_mov_b32", "exec_lo", full),
              salu("s_cmp_lt_u32", None, "s47", 16 // nt), salu("s_cselect_b32", "exec_lo", keep, "exec_lo")] + st + [salu("s_mov_b64", "exec", -1)]
    elif rows < 64:
        st = exec_rows(rows) + st + [salu("s_mov_b64", "exec", -1)]
    return x, st


def final_store(x, st):
    return [i for i in x if i.kind != "dsr"] + [waitds(), barrier()] + [i for i in x if i.kind == "dsr"] + st


def addtid(data, off):
    assert 0 <= off < 65536
    return Ins("ds_write_addtid_b32", [data], "dsw", [], [data, "m0"], f"offset:{off}" if off else "")


def exec_rows(rows):
    if rows < 32:
        return [salu("s_mov_b64", "exec", (1 << rows) - 1)]
    return [salu("s_mov_b32", "exec_hi", (1 << (rows - 32)) - 1)]


XSTR = 2064
NXY = 59
WSTR = 8768
YOFF = 4352
A_U = NXY * XSTR
A_FL = A_U + 8 * USTR
A_END = A_FL + 256
XROWS = [0, 1, 2, 3, 4, 5, 6, 7, 256, 258, 260, 262, 264, 512, 516, 520, 768, 772, 776,
         1024, 1032, 1280, 1288, 1536, 1544, 1792, 1800]
RT = [[0, 1, 2, 3, 4, 5, 6, 7, 256, 256, 258, 260, 260, 260, 262, 264],
      [512, 516, 520, 520, 768, 772, 776, 776, 1024, 1032, 1280, 1288, 1536, 1544, 1792, 1800]]
U2 = int(E('U2', '1'))
SPLIT = int(E('SPLIT', '22'))
UPOS = [float(x) for x in E("UPOS", "0.55,0.56,0.7,0.84").split(",")]
UP0 = float(E("UP0", "0.999"))
R2POS, R3POS = float(E("R2POS", "0")), float(E("R3POS", "0.15"))


def gl(op, d, voff, base, off=0, tag=None, fl=""):
    return Ins(op, [d, voff, base], "vml", [d], [voff, base], (f"offset:{off} " if off else "") + fl, tag=tag)


def gen_A_head():
    o = stamp(0)
    o += [smem("s_load_dwordx4", "s[4:7]", "s[0:1]", 80), smem("s_load_dwordx16", "s[8:23]", "s[0:1]", 0),
          smem("s_load_dwordx2", "s[28:29]", "s[0:1]", 64), smem("s_load_dwordx2", "s[40:41]", "s[0:1]", 0),
          smem("s_load_dwordx2", "s[24:25]", "s[0:1]", 120)]
    lane, off0, dummy, vP = VR("lane"), VR("off0"), VR("dummy"), VR("vP")
    prm = [VR(n) for n in ("Are", "Aim", "Bre", "Bim", "Cre", "Cim")]
    o += [salu("s_mov_b32", "s33", "s35"), salu("s_mov_b32", "s30", "s34"),
          salu("s_min_u32", "s48", "s30", 15), salu("s_lshl_b32", "s48", "s48", 2), salu("s_and_b32", "s47", "s3", 3),
          salu("s_add_u32", "s48", "s48", "s47"), salu("s_mul_i32", "s48", "s48", 8 * ROW), salu("s_lshl_b32", "s47", "s33", 7),
          salu("s_add_u32", "s52", "s48", "s47"),
          valu("v_and_b32", lane, 63, v0), valu("v_mul_u32_u24", off0, ROW, lane), valu("v_add_u32", off0, "s52", off0),
          valu("v_mov_b32", dummy, 0),
          salu("s_lshl_b32", "s47", "s33", 3), salu("s_and_b32", "s48", "s30", 7), salu("s_add_u32", "s34", "s47", "s48"),
          salu("s_lshl_b32", "s47", "s33", 1), salu("s_and_b32", "s48", "s30", 1), salu("s_add_u32", "s47", "s47", "s48"),
          salu("s_add_u32", "s47", "s47", 56), salu("s_cmp_lt_u32", None, "s30", 16), salu("s_cselect_b32", "s34", "s34", "s47"),
          salu("s_lshl_b32", "s36", "s34", 3), salu("s_add_u32", "s36", "s36", "s3"), salu("s_lshl_b32", "s37", "s36", 8),
          valu("v_lshl_add_u32", vP, lane, 2, "s37"),
          salu("s_cmp_lt_u32", None, "s3", 4), salu("s_cselect_b64", "s[48:49]", "s[4:5]", "s[6:7]"), salu("s_mov_b64", "exec", 255),
          Ins("global_load_dword", [dummy, off0, "s[48:49]"], "other", [], [dummy, off0, "s[48:49]"]), salu("s_mov_b64", "exec", -1)]
    o += [gl("global_load_dword", p, vP, f"s[{10 + 2 * i}:{11 + 2 * i}]", fl=KNT, tag="prm") for i, p in enumerate(prm)]
    o += [raw("@@EARLY")]
    o += [salu("s_lshl_b32", "s50", "s36", 1), salu("s_and_b32", "s44", "s50", -4),
          smem("s_load_dword", "s45", "s[22:23]", "s44"), smem("s_load_dword", "s46", "s[28:29]", "s44"),
          salu("s_mov_b32", "s26", 4718592), salu("s_mov_b32", "s27", 0x20000), salu("s_mov_b32", "s43", 0x20000),
          salu("s_lshr_b32", "s31", "s30", 3), salu("s_bfe_u32", "s48", "s30", 0x10001),
          salu("s_cmp_lt_u32", None, "s30", 16), salu("s_cselect_b32", "s31", "s31", "s48"),
          salu("s_mov_b32", "s42", 1536 * ROW), salu("s_cmp_eq_u32", None, "s31", 1), salu("s_cselect_b32", "s42", 2048 * ROW, "s42"),
          salu("s_lshl_b32", "s35", "s34", 4),
          salu("s_mul_i32", "s38", "s3", WSTR),
          salu("s_mul_i32", "s39", "s3", USTR), salu("s_add_u32", "s39", "s39", A_U),
          salu("s_mul_i32", "s32", "s3", 256 * ROW)]
    g, r, c, vU, t, off = (VR(n) for n in ("g", "r", "c", "vU", "t", "off"))
    o += [valu("v_bfe_u32", g, v0, 4, 2), valu("v_bfe_u32", r, v0, 2, 2), valu("v_and_b32", c, 3, v0),
          valu("v_mul_u32_u24", vU, 4 * ROW, lane), valu("v_add_u32", vU, "s35", vU),
          salu("s_lshl_b32", "s47", "s33", 7), salu("s_sub_u32", "s49", 1024, "s47"),
          valu("v_bfe_u32", off, lane, 1, 3),
          valu("v_mul_u32_u24", off, ROW, off), valu("v_and_b32", t, 1, lane), valu("v_mul_u32_u24", t, "s49", t),
          valu("v_add3_u32", off, off, t, "s52")]

    early = []

    def pf(spec, lab):
        if not PFA:
            return []
        a = VR("pfa", 2)
        x = []
        for k, (b, blk) in enumerate(spec):
            x += [salu("s_add_u32", "s48", f"s{b}", blk * 512 * ROW), salu("s_addc_u32", "s49", f"s{b + 1}", 0)]
            x += [[], [salu("s_mov_b32", "exec_lo", 0xFFFF0000)], [salu("s_mov_b32", "exec_lo", 0)], [salu("s_mov_b32", "exec_hi", 0xFFFF0000)]][k]
            x += [valu("v_mov_b32", a[0], "s48"), valu("v_mov_b32", a[1], "s49")]
        x += [salu("s_mov_b64", "exec", -1),
              Ins("v_add_co_u32", [a[0], "vcc", a[0], off], "valu", [a[0], "vcc"], [a[0], off]),
              Ins("v_addc_co_u32", [a[1], "vcc", 0, a[1], "vcc"], "valu", [a[1], "vcc"], [a[1], "vcc"])]
        if lab != "L_pf0":
            early.extend(x)
            x = []
        x += [salu("s_cmp_ge_u32", None, "s3", 4), raw(f"s_cbranch_scc1 {lab}", "condbegin")]
        m1 = sum((0x5555 if (AL and (b == 8 or (P8 and lab == "L_pf0"))) else 0xFFFF) << (16 * k) for k, (b, _) in enumerate(spec))
        m2 = sum((0x5555 if (AL and b != 8) else 0xFFFF) << (16 * k) for k, (b, _) in enumerate(spec))
        if PF2 & (1 if lab == "L_pf0" else 2):
            m0 = sum(0x5555 << (16 * k) for k in range(len(spec)))
            x += [salu("s_mov_b32", "exec_lo", m0 & 0xFFFFFFFF), salu("s_mov_b32", "exec_hi", m0 >> 32),
                  Ins("global_load_dword", [dummy, a, "off"], "other", [], [dummy, a], "nt")]
        x += [salu("s_cmp_lt_u32", None, "s33", 4)]
        for nm, sh in (("exec_lo", 0), ("exec_hi", 32)):
            x += [salu("s_mov_b32", nm, (m2 >> sh) & 0xFFFFFFFF), salu("s_cselect_b32", nm, (m1 >> sh) & 0xFFFFFFFF, nm)]
        x += [Ins("global_load_dword", [dummy, a, "off"], "other", [], [dummy, a], PFNT), salu("s_mov_b64", "exec", -1)]
        x += [raw(f"{lab}:", "condend")]
        return x

    K_, V_, U_, Q_ = 4, 6, 8, 56 if not STAMP else 98
    o += [smem("s_load_dwordx2", f"s[{Q_}:{Q_ + 1}]", "s[0:1]", 72 if BS else 104)] if BS or KP else []
    PFO = [[({"k": K_, "v": V_, "u": U_, "q": Q_}[x[0]], int(x[1])) for x in y.split(",")] for y in E("PFO", "k0,v0/k1,v1,k2,v2/k3,v3" if HOU else "k0,v0/k1,v1,u0,u1/q0,q1,k2,v2/u2,u3/k3,v3,q2,q3" if BS else "k0,v0/k1,v1,u0,u1/k2,v2/u2,u3").split("/")]
    R2 = pf(PFO[1], "L_pf1")
    R3 = pf(PFO[2], "L_pf2") if len(PFO) > 2 else []
    R4 = pf(PFO[3], "L_pf3") if len(PFO) > 3 else []
    R5 = pf(PFO[4], "L_pf4") if len(PFO) > 4 else []
    o += early
    npf = (R2POS < 0) + (R3POS < 0)
    if R2POS < 0:
        o, R2 = o + R2, []
    if R3POS < 0:
        o, R3 = o + R3, []
    ur = [VR(f"ur{i}", 4) for i in range(4)]
    uld = [bufld("buffer_load_dwordx4", ur[i], vU, "s[40:43]", "s32", i * ROW) for i in range(4)]
    if HOU:
        l16 = VR("l16")
        pl = Poll("s[22:23]", 0)
        o += [valu("v_lshlrev_b32", l16, 4, lane), salu("s_lshl_b32", "s55", "s36", 12), salu("s_add_u32", "s32", "s39", UPAD)]
        uld = [pl.load(), stamp() + pl.check() + stamp() + [salu("s_mov_b32", "m0", "s32")]
               + [dma("buffer_load_dwordx4", l16, "s[40:43]", "s55", i * 1024, tag="fu", fl="sc1") for i in range(4)]
               + [salu("s_mov_b32", "m0", "s53")]]
    if FAKEU:
        l16 = VR("l16")
        o += [valu("v_lshlrev_b32", l16, 4, lane), salu("s_lshl_b32", "s55", "s36", 12)]
        uld = [bufld("buffer_load_dwordx4", ur[i], l16, "s[40:43]", "s55", i * 1024, fl="sc1") for i in range(4)]
    vF, vG = fg_addr(o, g, r, c, "s38", "s39")
    vXw, vUw, vYw, vYr, vOut, z = (VR(n) for n in ("vXw", "vUw", "vYw", "vYr", "vOut", "z"))
    row, hh = VR("row"), VR("hh")
    vB, vA, vKa, vKb, vKc, sel = VR("vB"), VR("vA"), VR("vKa"), VR("vKb"), VR("vKc"), VR("sel")
    tt, base, kx = VR("tt", 2), VR("base"), VR("kx")
    o += [valu("v_lshl_add_u32", vXw, lane, 2, "s38"), salu("s_lshl_b32", "s52", "s3", 8), salu("s_add_u32", "s53", "s52", 30 * XSTR),
          salu("s_lshl_b32", "s47", "s3", 9), salu("s_add_u32", "s47", "s47", A_U + UPAD),
          valu("v_lshl_add_u32", vUw, lane, 3, "s47"),
          valu("v_mul_u32_u24", vYr, WSTR, r), valu("v_lshl_add_u32", vYr, g, 5, vYr),
          valu("v_lshl_add_u32", vYr, c, 3, vYr), valu("v_add_u32", vYr, YOFF, vYr),
          valu("v_and_b32", row, 31, lane), valu("v_lshrrev_b32", hh, 5, lane),
          valu("v_lshlrev_b32", base, 4, hh), valu("v_add_u32", base, "s52", base), valu("v_mov_b32", kx, XSTR),
          valu("v_add_u32", t, 31, row), valu("v_and_b32", t, 31, t), valu("v_mad_u32_u24", vB, t, kx, base),
          valu("v_lshlrev_b32", t, 2, row)]
    out_rows(o, vOut, g, r, c, "s35")
    vYr = store_bases(o, vYr, (8, 4, 2), ("s54", "s55", "s36"))
    for R in range(2):
        idx = [XROWS.index(x) for x in RT[R]]
        lo = min(idx)
        tab = sum((i - lo) << (4 * k) for k, i in enumerate(idx))
        o += [salu("s_mov_b32", "s48", tab & 0xFFFFFFFF), salu("s_mov_b32", "s49", tab >> 32)]
        o += [salu("s_mov_b32", "exec_lo", 0xFFFF0000), salu("s_mov_b32", "exec_hi", 0xFFFF0000)] if R else []
        o += [valu("v_lshrrev_b64", tt, t, "s[48:49]"), valu("v_and_b32", vA, 15, tt[0]),
              valu("v_mad_u32_u24", vA, vA, kx, base), valu("v_add_u32", vA, (32 + lo) * XSTR, vA)]
    o += [salu("s_mov_b64", "exec", -1), salu("s_add_u32", "s47", "s38", KPAD),
          valu("v_lshl_add_u32", t, row, 4, "s47"),
          valu("v_lshl_add_u32", vKa, hh, 3, t), valu("v_lshl_add_u32", vKb, hh, 9, t), valu("v_lshl_add_u32", vKc, hh, 10, t),
          valu("v_and_b32", t, 1, lane), valu("v_mul_u32_u24", t, 0x0404, t), valu("v_add_u32", sel, 0x07060100, t)]
    fl = Flags(o, lane, A_FL)
    zu = VR("zu")
    o += [valu("v_mov_b32", z, 0), valu("v_lshl_add_u32", zu, lane, 2, "s39"),
          salu("s_mov_b32", "exec_hi", 255), dsw("ds_write_b32", zu, z), salu("s_mov_b64", "exec", -1)]
    dt, dsk, one = VR("dt"), VR("dsk"), VR("one")
    o += [salu("s_and_b32", "s50", "s50", 2), salu("s_lshl_b32", "s50", "s50", 3),
          salu("s_lshr_b32", "s45", "s45", "s50"), salu("s_lshl_b32", "s45", "s45", 16),
          salu("s_lshr_b32", "s46", "s46", "s50"), salu("s_lshl_b32", "s46", "s46", 16),
          valu("v_mov_b32", dt, 0x3FB8AA3B), valu("v_mul_f32", dt, "s45", dt), valu("v_exp_f32", dt, dt),
          valu("v_mov_b32", dsk, 0), valu("v_mov_b32", one, 0x3F80),
          valu("v_cvt_pk_bf16_f32", dt, dt, dt), valu("v_and_b32", dt, 0xFFFF0000, dt),
          Ins("v_writelane_b32", [dsk, "s46", 0], "valu", [dsk], [dsk, "s46"]),
          *([smem("s_load_dwordx2", "s[22:23]", "s[0:1]", 128), waitds()] if HOU else []),
          salu("s_mov_b32", "m0", "s53"), addtid(one, XSTR),
          salu("s_mov_b32", "s50", 0x05040100), salu("s_mov_b32", "s51", 0x07060302)]
    o += stamp() + ([raw(f"s_waitcnt vmcnt({npf})\ns_cmp_lt_u32 s3, 4\ns_cbranch_scc1 L_pw\ns_waitcnt vmcnt(0)\nL_pw:", "vmclear")]
                    if npf else [waitvm("prm")]) + stamp()

    def cmul(a, b):
        d = VR("cx", 2)
        return d, [valu("v_pk_mul_f32", d, a, b, mods="op_sel:[0,0] op_sel_hi:[1,0]"),
                   valu("v_pk_fma_f32", d, a, b, d, mods="op_sel:[1,1,0] op_sel_hi:[0,1,1] neg_lo:[1,0,0]")]

    def put(rowi, a, neg):
        pk = VR("pk")
        return [valu("v_cvt_pk_bf16_f32", pk, a[0], Neg(a[1]) if neg else a[1]), addtid(pk, XSTR * (rowi - 1 if rowi < 32 else rowi - 30))]

    acc = VR("fa", 16)

    def kpass(ps):
        x = []
        qq = [VR("q", 2) for _ in range(3)]
        q = [qq[i // 2][i % 2] for i in range(6)]
        for i in range(6):
            x.append(valu("v_and_b32", q[i], 0xFFFF0000, prm[i]) if ps else valu("v_lshlrev_b32", q[i], 16, prm[i]))
        ar, ai, Bre, Bim, Cre, Cim = q
        x += [valu("v_mul_f32", ar, dt, ar), valu("v_mul_f32", ai, dt, ai),
              valu("v_mul_f32", ar, 0x3FB8AA3B, ar), valu("v_mul_f32", ai, 0x3E22F983, ai)]

        def cexp(mult):
            e, p, w = VR("e"), VR("p"), VR("w", 2)
            y = []
            if mult == 1:
                y += [valu("v_exp_f32", e, ar), valu("v_fract_f32", p, ai)]
            else:
                m = {8: 0x41000000, 256: 0x43800000}[mult]
                y += [valu("v_mul_f32", e, m, ar), valu("v_mul_f32", p, m, ai), valu("v_exp_f32", e, e), valu("v_fract_f32", p, p)]
            y += [valu("v_cos_f32", w[0], p), valu("v_sin_f32", w[1], p), valu("v_mul_f32", w[0], e, w[0]), valu("v_mul_f32", w[1], e, w[1])]
            return w, y

        w8, x8 = cexp(8)
        w1, x1 = cexp(1)
        x += x8[:6] + [valu("v_mul_f32", Bre, dt, Bre), valu("v_mul_f32", Bim, dt, Bim)] + x1[:4] + x8[6:] + x1[4:]
        cc, y = cmul(qq[2], qq[1])
        x += y
        def ilv(*ls):
            ls, out = [list(l) for l in ls], []
            while any(ls):
                for l in ls:
                    if l:
                        out.append(l.pop(0))
            return out

        w16, y = cmul(w8, w8)
        yc = [put(1, w8, False), y + put(2, w16, False)]
        yv = [w8, w16]
        for m in range(3, 32):
            yv[1 - m % 2], y = cmul(yv[1 - m % 2], w16)
            yc[1 - m % 2] += y + put(m, yv[1 - m % 2], False)
        w256, y = cmul(yv[1], w16)
        yc[1] += y
        X = {0: cc}

        def xstep(dst, src, w):
            X[dst], y = cmul(X[src], w)
            return y + (put(32 + XROWS.index(dst), X[dst], True) if dst in XROWS else [])

        xa = put(32, cc, True)
        for i in range(1, 8):
            xa += xstep(i, i - 1, w1)
        xa += xstep(258, 2, w256) + xstep(260, 4, w256) + xstep(262, 6, w256) + xstep(516, 260, w256) + xstep(772, 516, w256)
        xb = xstep(8, 0, w8)
        for k in range(1, 8):
            xb += ilv(xstep(256 * k, 256 * (k - 1), w256), xstep(256 * k + 8, 256 * (k - 1) + 8, w256))
        yc[0] = yc[0][:2] + [[]] * 2 + yc[0][2:]
        tb = [salu("s_mov_b32", "m0", "s52")] + [i_ for i_ in ilv(yc[1], yc[0]) if i_ != []]
        tbx = [salu("s_mov_b32", "m0", "s53")] + ilv(xa, xb)
        def delay(tb, dly=2):
            t2, pend_ = [], []
            for i_ in tb:
                if i_.kind == "dsw":
                    pend_.append([dly, i_])
                    continue
                t2.append(i_)
                for p_ in pend_:
                    p_[0] -= 1
                while pend_ and pend_[0][0] <= 0:
                    t2.append(pend_.pop(0)[1])
            return t2 + [p_[1] for p_ in pend_]

        tb, tbx = delay(tb), delay(tbx)
        rd, mm = [], []
        for k in range(8):
            af, bf = VR("af", 4), VR("bf", 4)
            rd += [dsr("ds_read_b128", bf, vB, 32 * k), dsr("ds_read_b128", af, vA, 32 * k)]
            mm.append(mfma32(acc, af, bf, 0 if (k == 0 and ps == 0) else acc))
        return x, tb, weave(tbx, rd[0::2], 8) + rd[1::2], mm

    up = []
    for ch in range(8):
        sl, ud = "s51" if ch & 1 else "s50", VR("ud", 2)
        up += [valu("v_perm_b32", ud[0], ur[1][ch // 2], ur[0][ch // 2], sl),
               valu("v_perm_b32", ud[1], ur[3][ch // 2], ur[2][ch // 2], sl),
               dsw("ds_write_b64", vUw, ud, ch * USTR)]
    if FAKEU:
        fa = VR("fa")
        up = [valu("v_add_u32", fa, "s39", l16)] + [dsw("ds_write_b128", fa, ur[i], UPAD + 1024 * i) for i in range(4)]
    if HOU:
        up = [waitvm("fu")]
    up += [valu("v_mov_b32", dummy, dummy)]
    x0, tb0, rd0, mm0 = kpass(0)
    x1, tb1, rd1, mm1 = kpass(1)
    mo = int(E('MO', '40'))
    kg = x0 + stamp() + tb0 + rd0 + stamp() + x1 + tb1[:mo] + mm0 + stamp() + tb1[mo:] + rd1
    if HOU:
        kx_ = max(i_ for i_, y_ in enumerate(kg) if y_.op == "s_mov_b32" and y_.ops[0] == "m0") / len(kg)
        upos = [(max(kx_ + 0.01, float(E("UCHK", "0.9"))), uld[1]), (float(E("ULD", "0.75")), uld[0])]
    elif U2:
        UP = [float(x) for x in E("UP", "0.4,0.55,0.85,0.99").split(",")]
        for x in uld:
            x.kind = "other"
        upos = [(UP[k], [raw(f"s_cmp_lt_u32 s3, 4\ns_cbranch_{'scc1' if k >> 1 else 'scc0'} L_ul{k}", "condbegin")]
                 + uld[2 * (k & 1):2 * (k & 1) + 2] + [raw(f"L_ul{k}:", "condend")]) for k in range(4) if UP[k] <= 1]
    else:
        upos = [(UPOS[i], [uld[i]]) for i in range(4)]
    ins = sorted([(max(0, R2POS), R2), (max(0, R3POS), R3), (float(E('R4POS', '0.45')), R4), (float(E('R5POS', '0.9')), R5)] + upos, key=lambda e: -e[0])
    for pos, x in ins:
        k = int(pos * len(kg))
        kg[k:k] = x
    o += kg + stamp() + [raw("@@SPLIT")]

    cvt = lambda d, a, b: valu("v_cvt_pk_bf16_f32", d, a, b)

    def exp0():
        d0, d1, t0 = VR("d0", 2), VR("d1", 2), VR("t0")
        return [[salu("s_mov_b64", "exec", (1 << 24) - 1), dsw("ds_write_b32", vXw, z), salu("s_mov_b64", "exec", -1)],
                valu("v_add_f32", t0, acc[0], dsk), cvt(d0[1], acc[2], acc[3]), cvt(d0[0], t0, acc[1]), dsw("ds_write_b64", vKa, d0),
                cvt(d1[0], acc[4], acc[5]), cvt(d1[1], acc[6], acc[7]), dsw("ds_write_b64", vKa, d1, 512)]

    def exp1():
        d = VR("d2", 4)
        x = [cvt(d[0], acc[8], acc[8]), cvt(d[1], acc[8], acc[9]), cvt(d[2], acc[9], acc[9]), cvt(d[3], acc[10], acc[10]),
             dsw("ds_write_b128", vKb, d, 1024)]
        for p in range(2):
            d = VR("d3", 4)
            a0, a8 = acc[12 + 2 * p], acc[13 + 2 * p]
            x += [cvt(d[0], a0, a0), cvt(d[3], a8, a8), cvt(d[1], a0, a0), valu("v_perm_b32", d[2], d[3], d[0], sel),
                  dsw("ds_write_b128", vKc, d, 2048 + 512 * p)]
        return x

    e0 = exp0()
    if U2:
        def guarded(cond, lab):
            return ([raw(f"s_cmp_lt_u32 s3, 4\ns_cbranch_{cond} {lab}", "condbegin"), raw("s_waitcnt vmcnt(0)", "vmclear")] + up
                    + [raw(f"{lab}:", "condend")])
        tail_ = lambda hi: mm1[:4] + guarded("scc0", f"L_u0{hi}") + mm1[4:]
        up_late = lambda hi: guarded("scc1", f"L_u1{hi}")
        ul_late = lambda hi: [(int(UP[k]) - 2, [raw(f"s_cmp_lt_u32 s3, 4\ns_cbranch_scc1 L_um{k}{hi}", "condbegin")]
                               + uld[2 * (k & 1):2 * (k & 1) + 2] + [raw(f"L_um{k}{hi}:", "condend")]) for k in (2, 3) if UP[k] > 1]
    else:
        o += weave(mm1, up[:-7], 0) + up[-7:]
        up_late = None
    ev = [x for x in e0 if not isinstance(x, list) and x.kind == "valu"]
    join = lambda hi: tail_(hi) + ev + [waitds(), raw("s_waitcnt lgkmcnt(0)"), *stamp(), barrier()]
    e0 = [x for x in e0 if isinstance(x, list) or x.kind != "valu"]
    return o, dict(vF=vF, vG=vG, vYw=vYw, vYr=vYr, vOut=vOut, exp=(lambda: e0[1:2] + e0[:1] + e0[2:], exp1), fl=fl, up=up_late, ul=ul_late, join=join)


A_SG = [[(0, 8), (8, 8), (16, 4), (20, 4)], [(22, 4), (26, 2), (28, 4)] if SPLIT == 22 else [(24, 2), (26, 2), (28, 4)]]


def gen_A_conv(cx, hi):
    o = cx["join"](hi)
    cv = Conv(cx["vF"], cx["vG"])
    vYr, vOut = cx["vYr"], cx["vOut"]

    def stage(a):
        pk = VR("pk")
        ya = cv.y[a] if not (hi and a == SPLIT) else cv.y[a + 1]
        return [valu("v_cvt_pk_bf16_f32", pk, ya, cv.y.get(a + 1, ya)), addtid(pk, YOFF + 128 * a)]

    def store(t0, nt):
        skip = [t for t in range(t0, t0 + nt) if (t == SPLIT if hi else t == SPLIT + 1)]
        return row_store(t0, nt, vYr, 4 * WSTR, vOut, "s[24:27]", skip=skip[0] if skip else None,
                         fl=E("STA", "").replace("_", " ") if t0 < int(E("STAN", "32")) - 12 * (1 - hi) else "")

    if not hi:
        order = [(j, j - 2 * l) for j in range(SPLIT + 1) for l in range(j // 2, -1, -1)]
    else:
        IM = int(E("IM", "4"))
        js = list(range(SPLIT, 32))
        if U2:
            order = [(j, 2 * I + j % 2) for I in range(IM) for j in js]
            order += [(j, 2 * I + j % 2) for I in range(IM, 8) for j in js if j < int(E("HJ", "26"))]
        else:
            order = [(j, j - 2 * l) for l in range(4) for j in js if j // 2 - l <= int(E("HS", "12"))]
            order += [(j, 2 * I + j % 2) for I in range(IM) for j in js]
        order += [x for J in range(11, 16) for I in range(IM, J + 1) for p in (0, 1) for x in [(2 * J + p, 2 * I + p)]
                  if x not in order and x[0] in js]
    n = len(order)
    needF, needG, done = {}, {}, {}
    for k, (j, i) in enumerate(order):
        needF.setdefault((j - i) // 2, k)
        needG.setdefault(i, k)
        done[j] = k
    LEAD = 8
    C = []

    def chain(*a, **kw):
        C.append(Chain(*a, **kw))
        return C[-1]

    preF, preG = [], []
    flat = lambda x: [z for y in x for z in (y if isinstance(y, list) else [y])]
    sw = U2 and hi
    pre = flat(cx["exp"][1 if sw else 0]())
    late = chain(cx["exp"][0 if sw else 1](), name="exp")
    for l, k in sorted(needF.items(), key=lambda x: x[1]):
        x = cv.loadF(l)
        dep = l <= 4 if sw else l >= 4
        if k < LEAD + 2 and not dep:
            preF += x
        else:
            chain(x, start=k - 30, due=k - 7, after=[late] if dep else [], name=f"F{l}")
    if U2:
        ul = int(E("UL", "18"))
        lds_ = [chain([x], start=k, due=k + 1) for k, x in cx["ul"](hi)]
        u1 = chain([cx["up"](hi) + cx["fl"].arrive(7)], start=ul, due=ul + 2, after=lds_, name="up")
        u2 = chain(cx["fl"].check(7), after=[u1], lag=int(E("SLACKA", "5")), name="uchk")
    for p, k in sorted(cv.need_pairs(order).items(), key=lambda x: x[1]):
        x = cv.loadP(*p)
        m = cv.NCH * p[0] + p[1]
        if k < LEAD:
            assert not (U2 and m > 16)
            preG += x
        else:
            chain(x, start=k - 30, due=k - 7, after=[u2] if U2 and m > 16 else [], name=f"P{m}")
    back = [cv.mm(j, i) for j, i in order]
    o += [salu("s_mov_b32", "m0", "s38")] + pre + preF[:2] + preG + preF[2:] + stamp()
    tiles = sorted(done)
    hor, stg = {}, {}
    for t in tiles:
        red = hi and t == SPLIT
        hor[t] = chain(cv.horner(t, final=not red), start=done[t] + 3, due=done[t] + 24, after=[hor[t - 1]] if t - 1 in hor else [], name=f"h{t}")
    sg = A_SG[hi]
    fl = cx["fl"]
    for e, (t0, nt) in enumerate(sg):
        cs = []
        for a in range(t0, t0 + nt, 2):
            last = a + 1 if a + 1 in hor else a
            cs.append(chain(stage(a), after=[hor[last]], due=done[last] + 30))
        if e < len(sg) - 1:
            a_ = chain(fl.arrive(e) + (stamp() if STAMP != 3 else []), after=cs, name="arr")
            c_ = chain(fl.check(e), after=[a_], lag=int(E("SLACKA", "5")), name="chk")
            s1, s2 = store(t0, nt)
            if int(E("WB", "0")) == 3 and hi == int(E("WBH", "0")) and e == int(E("WBG", "1")):
                s2 = s2 + [raw(f"s_cmp_lg_u32 s30, {8 * hi}\ns_cbranch_scc1 L_wb\ns_cmp_lg_u32 s3, 0\ns_cbranch_scc1 L_wb\nbuffer_wbl2 sc1\nL_wb:")]
            pst = chain(s1 + [s2], after=[c_] + ([pst] if e else []), due=done[t0 + nt - 1] + 40, name="st")
    log = []
    sch = schedule(back, C, log=log, nvalu=float(E('NVA', '2')), nlds=int(E('NLA', '2')), ntot=int(E('NTA', '4')))
    if STAMP == 3:
        for k in range(0, n, 16):
            q_ = sch.index(back[k])
            sch[q_ + 1:q_ + 1] = stamp()
    o += sch
    if E("LOG"):
        print("\n".join(log), file=sys.stderr)
    o += [raw(f"s_sleep {E('DLYA')}")] if E("DLYA") else []
    o += stamp() + final_store(*store(*sg[-1])) + stamp()
    WB = int(E("WB", "0"))
    if WB in (1, 2):
        lab = f"L_wb{hi}"
        o += [raw("s_waitcnt vmcnt(0)")] + ([barrier()] if WB == 2 else [])
        o += [raw(f"s_cmp_lg_u32 s3, 0\ns_cbranch_scc1 {lab}\nbuffer_wbl2 sc1\n{lab}:")]
    o += stamp_out()
    return o


def gen_P():
    npx = NP // 8
    if AL:
        a, t, d = VR("a"), VR("t"), VR("d")
        o = [smem("s_load_dwordx2", "s[8:9]", "s[0:1]", 72), smem("s_load_dwordx2", "s[12:13]", "s[0:1]", 80),
             smem("s_load_dwordx2", "s[16:17]", "s[0:1]", 88)]
        for b in (8, 12, 16):
            o += [salu("s_mov_b32", f"s{b + 2}", 2359296), salu("s_mov_b32", f"s{b + 3}", 0x20000)]
        o += [salu("s_cmp_lt_u32", None, "s35", 4), salu("s_cselect_b32", "s40", 11, 8), salu("s_cselect_b32", "s41", 1, 0),
              salu("s_mov_b32", "s42", 255), salu("s_cselect_b32", "s42", 511, "s42"),
              salu("s_mov_b32", "s43", 255), salu("s_cselect_b32", "s43", 0x7FF, "s43"),
              salu("s_lshl_b32", "s48", "s34", 3), salu("s_add_u32", "s48", "s48", "s3"), salu("s_mul_i32", "s48", "s48", "s40"),
              salu("s_lshl_b32", "s47", "s35", 7), salu("s_sub_u32", "s49", 1024, "s47"),
              valu("v_and_b32", a, 31, v0), valu("v_add_u32", a, "s48", a), valu("v_min_u32", a, "s42", a),
              valu("v_and_b32", t, "s41", a), Ins("v_cmp_eq_u32", ["s[52:53]", 0, t], "valu", ["s[52:53]"], [t]),
              valu("v_lshrrev_b32", a, "s41", a), valu("v_mul_u32_u24", t, "s49", t),
              valu("v_bfe_u32", d, v0, 5, 1), valu("v_lshl_add_u32", a, d, 8, a), valu("v_mul_u32_u24", a, ROW, a),
              valu("v_add3_u32", a, a, t, "s47"), valu("v_mov_b32", d, 0)]
        if P8:
            a8 = VR("a8")
            o += [salu("s_lshl_b32", "s48", "s34", 3), salu("s_add_u32", "s48", "s48", "s3"), salu("s_mul_i32", "s48", "s48", 11),
                  valu("v_and_b32", a8, 63, v0), valu("v_add_u32", a8, "s48", a8), valu("v_min_u32", a8, 511, a8),
                  valu("v_mul_u32_u24", a8, ROW, a8), valu("v_add_u32", a8, 1024, a8), waitds(),
                  salu("s_cmp_ge_u32", None, "s35", 4), raw("s_cbranch_scc1 L_p8", "condbegin"), salu("s_mov_b64", "exec", 0x7FF)]
            o += [Ins("buffer_load_dword", [d, a8, srd, 0], "other", [], [d, a8, srd], "offen") for srd in ("s[12:15]", "s[16:19]")]
            o += [raw("L_p8:", "condend"), barrier()]
    else:
        per = -(-512 // (npx * 8))
        a, t, d = VR("a"), VR("t"), VR("d")
        o = [smem("s_load_dwordx2", "s[8:9]", "s[0:1]", 72), smem("s_load_dwordx2", "s[12:13]", "s[0:1]", 80),
             smem("s_load_dwordx2", "s[16:17]", "s[0:1]", 88)]
        for b in (8, 12, 16):
            o += [salu("s_mov_b32", f"s{b + 2}", 2359296), salu("s_mov_b32", f"s{b + 3}", 0x20000)]
        o += [salu("s_sub_u32", "s47", "s2", NA + NB), salu("s_lshr_b32", "s48", "s47", 3),
              salu("s_lshl_b32", "s48", "s48", 3), salu("s_add_u32", "s48", "s48", "s3"), salu("s_mul_i32", "s48", "s48", per),
              salu("s_and_b32", "s47", "s47", 7), salu("s_mul_i32", "s47", "s47", 144), salu("s_and_b32", "s47", "s47", -128),
              valu("v_and_b32", a, 31, v0), valu("v_add_u32", a, "s48", a), valu("v_min_u32", a, 511, a),
              valu("v_bfe_u32", t, v0, 5, 1), valu("v_lshl_add_u32", a, t, 9, a),
              valu("v_and_b32", t, 1, a), valu("v_lshrrev_b32", a, 1, a), valu("v_mul_u32_u24", a, ROW, a),
              valu("v_lshl_add_u32", a, t, 7, a), valu("v_add_u32", a, "s47", a), valu("v_mov_b32", d, 0)]
    if FAKE:
        l, regs = VR("l"), [VR("x", 4) for _ in range(18)]
        o += [salu("s_mov_b64", "exec", -1), smem("s_load_dwordx2", "s[20:21]", "s[0:1]", 0), smem("s_load_dwordx2", "s[24:25]", "s[0:1]", 136),
              salu("s_mov_b32", "s22", 2359296), salu("s_mov_b32", "s23", 0x20000), salu("s_mov_b32", "s26", 2 * 2359296), salu("s_mov_b32", "s27", 0x20000),
              salu("s_sub_u32", "s47", "s2", NA + NB), salu("s_mul_i32", "s47", "s47", 64 * ROW), valu("v_lshlrev_b32", l, 4, v0),
              valu("v_add_u32", l, "s47", l)]
        ks = [k for k in range(18) if (FAKEU, FAKEQ)[k // 9]]
        for k in ks:
            o += [salu("s_mov_b32", "s48", (k % 9) * 8192), bufld("buffer_load_dwordx4", regs[k], l, ("s[20:23]", "s[8:11]")[k // 9], "s48")]
        for k in ks:
            o += [salu("s_mov_b32", "s48", (k % 9) * 8192 + (k // 9) * 2359296), bufst("buffer_store_dwordx4", regs[k], l, "s[24:27]", "s48", fl="sc1")]
        if FAKE == 3:
            return o
    for x in E("PP", "w,q0,k3,v3,q1,q2,q3").split(","):
        if x == "w":
            o += [raw("s_waitcnt vmcnt(0)")]
            continue
        srd = {"q": "s[8:11]", "k": "s[12:15]", "v": "s[16:19]"}[x[0]]
        m = "s43" if AL else (1 << per) - 1
        o += [salu("s_mov_b32", "exec_lo", 0 if x[2:] == "b" else m), salu("s_mov_b32", "exec_hi", 0 if x[2:] == "a" else m)]
        o += [salu("s_mov_b32", "s47", int(x[1]) * 512 * ROW)]
        if PF2 & 4:
            o += [salu("s_mov_b64", "s[50:51]", "exec"), salu("s_and_b64", "exec", "exec", "s[52:53]"),
                  Ins("buffer_load_dword", [d, a, srd, "s47"], "vml", [], [d, a, srd, "s47"], "offen nt"),
                  salu("s_mov_b64", "exec", "s[50:51]")]
        o += [Ins("buffer_load_dword", [d, a, srd, "s47"], "vml", [], [d, a, srd, "s47"], "offen " + PFNT)]
        o += [barrier()] if int(E("PBAR", "1")) else []
    return o


T_SCR = 16 * 8192


def gen_T():
    o = stamp(0) + [smem("s_load_dwordx2", "s[8:9]", "s[0:1]", 0), smem("s_load_dwordx2", "s[12:13]", "s[0:1]", 72),
         smem("s_load_dwordx2", "s[16:17]", "s[0:1]", 136), smem("s_load_dwordx2", "s[20:21]", "s[0:1]", 128)]
    for b, n in ((8, 2359296), (12, 2359296), (16, 4718592)):
        o += [salu("s_mov_b32", f"s{b + 2}", n), salu("s_mov_b32", f"s{b + 3}", 0x20000)]
    o += [salu("s_sub_u32", "s47", "s2", NA + NB), salu("s_mul_i32", "s31", "s47", 57), salu("s_lshr_b32", "s31", "s31", 9),
          salu("s_mul_i32", "s48", "s31", 9), salu("s_sub_u32", "s30", "s47", "s48"),
          salu("s_mul_i32", "s32", "s31", 512 * ROW), salu("s_lshl_b32", "s48", "s30", 7), salu("s_add_u32", "s32", "s32", "s48"),
          salu("s_lshl_b32", "s33", "s3", 10),
          salu("s_lshl_b32", "s34", "s30", 3), salu("s_add_u32", "s34", "s34", "s3"), salu("s_lshl_b32", "s34", "s34", 15),
          salu("s_lshl_b32", "s48", "s31", 10), salu("s_add_u32", "s34", "s34", "s48")]
    lane, g, r, c = lane_fields(o)
    x, f, t, vSu, vSq, vTr, vW, vR, vO = (VR(n) for n in "x f t vSu vSq vTr vW vR vO".split())
    h, tau = VR("h"), VR("tau")
    o += [salu("s_lshl_b32", "s47", "s3", 3), valu("v_lshrrev_b32", x, 3, lane), valu("v_add_u32", x, "s47", x),
          valu("v_lshrrev_b32", f, 2, x), valu("v_and_b32", f, 6, f), valu("v_bfe_u32", t, x, 1, 1), valu("v_or_b32", f, f, t),
          valu("v_and_b32", t, 7, lane), valu("v_xor_b32", f, f, t), valu("v_lshlrev_b32", f, 4, f),
          valu("v_mul_u32_u24", vSu, ROW, x), valu("v_add_u32", vSu, vSu, f),
          valu("v_lshrrev_b32", vSq, 1, x), valu("v_and_b32", t, 1, x), valu("v_lshl_add_u32", vSq, t, 6, vSq),
          valu("v_mul_u32_u24", vSq, ROW, vSq), valu("v_add_u32", vSq, vSq, f)]

    def ld(a, k):
        row = 64 * k if a == 0 else 128 * (k >> 1) + 32 * (k & 1)
        return [salu("s_add_u32", "m0", "s33", 8192 * (8 * a + k)), salu("s_add_u32", "s47", "s32", row * ROW),
                dma("buffer_load_dwordx4", (vSu, vSq)[a], ("s[8:11]", "s[12:15]")[a], "s47", 0, tag=f"l{a}{k}", fl=KNT)]

    arrs = [a for a in range(2) if (HOU, HOQ)[a]]
    for k in range(8):
        o += ld(arrs[0], k)
    o += [valu("v_and_b32", h, 1, g), valu("v_lshrrev_b32", tau, 1, g),
          valu("v_lshlrev_b32", t, 1, c), valu("v_lshrrev_b32", f, 1, r), valu("v_or_b32", t, t, f), valu("v_xor_b32", t, "s3", t),
          valu("v_lshlrev_b32", vTr, 2, tau), valu("v_add_u32", vTr, vTr, c), valu("v_lshl_add_u32", vTr, vTr, 3, r),
          valu("v_lshlrev_b32", vTr, 7, vTr), valu("v_lshl_add_u32", vTr, t, 4, vTr), valu("v_lshl_add_u32", vTr, h, 3, vTr),
          salu("s_mul_i32", "s47", "s3", 2560), salu("s_add_u32", "s47", "s47", T_SCR),
          valu("v_lshl_add_u32", vW, h, 2, c), valu("v_mul_u32_u24", vW, 160, vW), valu("v_lshl_add_u32", t, tau, 2, r),
          valu("v_lshl_add_u32", vW, t, 4, vW), valu("v_add_u32", vW, "s47", vW),
          valu("v_lshrrev_b32", t, 3, lane), valu("v_mul_u32_u24", vR, 160, t), valu("v_lshlrev_b32", vO, 12, t),
          valu("v_and_b32", t, 7, lane), valu("v_lshl_add_u32", vR, t, 4, vR), valu("v_add_u32", vR, "s47", vR),
          valu("v_lshl_add_u32", vO, t, 4, vO)]
    one, z = VR("one"), VR("z")
    o += [valu("v_mov_b32", one, 1), valu("v_mov_b32", z, 0)]
    vT2 = VR("vT2")
    o += [valu("v_add_u32", vT2, 65536, vTr)]
    for a in arrs:
        src = (vTr, vT2)[a]
        for k0 in (0, 4):
            d, e = [VR("d", 4) for _ in range(4)], [VR("e", 4) for _ in range(4)]
            o += [waitvm(f"l{a}{k0 + 3}"), barrier(), *stamp()]
            for k in range(4):
                o += [dsr("ds_read_b64_tr_b16", d[k][0:2], src, 8192 * (k0 + k)), dsr("ds_read_b64_tr_b16", d[k][2:4], src, 8192 * (k0 + k) + 512)]
            for k in range(4):
                o += [dsw("ds_write_b128", vW, d[k], 1280 * (k & 1)), dsr("ds_read_b128", e[k], vR, 1280 * (k & 1))]
            for k in range(4):
                st = bufst("buffer_store_dwordx4", e[k], vO, "s[16:19]", "s47", fl="sc1")
                st.tag = f"s{a}"
                o += [salu("s_add_u32", "s47", "s34", 128 * (k0 + k) + 2359296 * a), st]
        if a == 0 and len(arrs) > 1:
            for k in range(8):
                o += ld(1, k)
        o += [*stamp(), waitvm(f"s{a}"), barrier(), *stamp(), salu("s_cmp_lg_u32", None, "s3", 0), raw(f"s_cbranch_scc1 L_t{a}"),
              salu("s_mov_b64", "exec", 1),
              Ins("global_atomic_add", [z, one, "s[20:21]"], "other", [], [z, one, "s[20:21]"], f"offset:{128 * a} sc1"),
              salu("s_mov_b64", "exec", -1), raw(f"L_t{a}:")]
    return o + stamp_out()


WARM = int(E("WARM", "0"))


def isize(l):
    op = l.split()[0] if l.split() else ""
    if not op or op.endswith(":") or op.startswith("@@"):
        return 0
    if op.startswith(("s_load", "s_mem", "ds_", "buffer_", "global_", "v_mfma", "v_pk_", "v_cvt_pk", "v_perm", "v_fma", "v_mad")) or "_dpp" in op:
        return 8
    return 8 if "0x" in l else 4


def icache_warm(lines, name, start):
    if not WARM:
        return lines
    lines = [y for x in lines for y in x.split("\n")]
    spots, n = [], 0
    for i in range(start, len(lines)):
        n += isize(lines[i])
        if n >= WARM and lines[i].startswith(("v_mfma", "v_pk_fma")):
            spots.append(i)
            n = 0
    per = -(-len(spots) // 8)
    out = []
    for i, l in enumerate(lines):
        out.append(l)
        if i in spots:
            k = spots.index(i)
            last = (k + 1) % per == 0 or k + 1 == len(spots)
            out += [f"L_w{name}{k}:", f"s_cbranch_execz L_w{name}" + ("r" if last else str(k + 1))]
    call = ["s_mov_b64 exec, 0"]
    for w in range(8):
        if w * per < len(spots):
            call += [f"s_cmp_eq_u32 s3, {w}", f"s_cbranch_scc1 L_w{name}{w * per}"]
    call += [f"L_w{name}r:", "s_mov_b64 exec, -1"]
    CALLS[name] = call
    return out


CALLS = {}


def place_calls(L):
    out = []
    for l in L:
        out += CALLS.get(l.split()[1], []) if l.startswith("@@WARM") else [l]
    return out


def dedup_m0(ins):
    out, cur = [], None
    for x in ins:
        if x.kind in ("condbegin", "condend"):
            cur = None
        if x.kind == "salu" and "m0" in x.ws:
            v = tuple(x.ops)
            if x.op == "s_mov_b32" and v == cur:
                continue
            cur = v
        out.append(x)
    return out


def code_prefetch():
    CP = int(E("CP", "8"))
    if not CP:
        return []
    return ["s_getpc_b64 s[36:37]", f"s_mov_b32 s38, ((L_last - L_cp) / 128 + {CP - 1}) / {CP}", "s_mul_i32 s39, s38, s34",
            "v_add_u32 v2, s39, v0", "v_min_u32 v2, (L_last - L_cp) / 128, v2", "v_lshlrev_b32 v2, 7, v2",
            "v_mov_b32 v3, s37", "v_add_co_u32 v2, vcc, s36, v2", f"s_cmp_lt_u32 s34, {CP}", "s_cselect_b32 s38, s38, 0",
            "v_addc_co_u32 v3, vcc, 0, v3, vcc", "v_cmp_gt_u32 vcc, s38, v0", "s_and_saveexec_b64 s[38:39], vcc", "s_cbranch_execz L_cp",
            f"global_load_dword v{NV - 1}, v[2:3], off", "L_cp:", "s_mov_b64 exec, -1"]


NV = 248


import subprocess, tempfile


def sizes(lines):
    src = ['.amdgcn_target "amdgcn-amd-amdhsa--gfx950"', ".text"]
    for i, l in enumerate(lines):
        src += [f"Z{i}:", "s_branch 0" if l.startswith(("s_cbranch", "s_branch")) else "" if l.endswith(":") else l]
    src += [f"Z{len(lines)}:"]
    with tempfile.TemporaryDirectory() as d:
        open(d + "/a.s", "w").write("\n".join(src) + "\n")
        subprocess.run(["clang", "-x", "assembler", "-target", "amdgcn-amd-amdhsa", "-mcpu=gfx950", "-c", d + "/a.s", "-o", d + "/a.o"], check=True)
        out = subprocess.run(["llvm-readelf", "-sW", d + "/a.o"], capture_output=True, text=True).stdout
    ad = {int(x.split()[-1][1:]): int(x.split()[1], 16) for x in out.splitlines() if x.split() and x.split()[-1][:1] == "Z"}
    return [ad[i + 1] - ad[i] for i in range(len(lines))]


def align8(lines, start):
    lines = [y for x in lines for y in x.split("\n")]
    if not int(E("AL8", "0")):
        return lines
    sz = sizes(lines)
    wid = lambda i: sz[i] == 4 and lines[i].startswith("v_") and not lines[i].startswith(("v_cmp", "v_read", "v_addc", "v_add_co", "v_fmac"))
    pos, lastw, n = 4 * start, None, 0
    for i, l in enumerate(lines):
        if sz[i] == 8 and pos % 8:
            if lastw is not None:
                op = lines[lastw].split()[0]
                lines[lastw] = lines[lastw].replace(op, op + "_e64", 1)
                pos += 4
            else:
                n += 1
        if sz[i] == 8:
            lastw = None
        elif wid(i):
            lastw = i
        pos += sz[i]
    print("misaligned 8-byte instructions left:", n, "of", sum(x == 8 for x in sz), file=sys.stderr)
    return lines


def nostore(x):
    return [i for i in x if i.kind != "vms" or "global" in i.op] if int(E("NOST", "0")) else x


def build():
    hdr = open("cdna_kernels/" + NAME + ".s.ref").read().split("\n")
    cut = [i for i, l in enumerate(hdr) if "@launch" in l and l.startswith("; @launch")][0]
    lds = max(A_END, B_END)
    assert lds <= 163840
    L = hdr[:cut] + [f"; @launch grid=({288 if BS else NA + NB + NP},1,1) block=(512,1,1) lds={lds}",
                     '.amdgcn_target "amdgcn-amd-amdhsa--gfx950"', ".text", f".globl {NAME}_kernel", ".p2align 8",
                     f".type {NAME}_kernel,@function", f"{NAME}_kernel:"]
    if KW:
        L += [f"s_load_dword s{98 if STAMP else 64}, s[0:1], 0", f"s_load_dword s{99 if STAMP else 65}, s[0:1], 64"]
    L += [f"s_mov_b32 {SPIN}, 0"]
    if HO:
        L += [f"s_cmp_ge_u32 s2, {NA + NB + NP}", "s_cbranch_scc1 L_end", f"s_add_u32 s2, s2, {NA + NB}", "s_and_b32 s2, s2, 255"]
    if AL:
        assert not HO
        L += [f"s_cmp_ge_u32 s2, {288 if BS else 256}", "s_cbranch_scc1 L_end", "v_lshrrev_b32 v1, 6, v0", "s_and_b32 s35, s2, 7", "s_lshr_b32 s34, s2, 3",
              "v_readfirstlane_b32 s3, v1"] + code_prefetch() + ["s_cmp_lt_u32 s35, 4", "s_cselect_b32 s36, 10, 8", "s_cselect_b32 s37, 6, 4" if ORD else "s_cselect_b32 s37, 16, 20",
              "s_cmp_lt_u32 s34, s36", "s_cbranch_scc1 L_B", "s_sub_u32 s34, s34, s36", "s_cmp_lt_u32 s34, s37",
              "s_cbranch_scc1 " + ("L_P" if ORD else "L_A"), "s_sub_u32 s34, s34, s37", "s_branch " + ("L_A" if ORD else "L_P"), "L_B:"]
    else:
        L += [f"s_cmp_ge_u32 s2, {NA + NB}", "s_cbranch_scc1 L_P", "v_lshrrev_b32 v1, 6, v0", f"s_cmp_ge_u32 s2, {NB}",
              "v_readfirstlane_b32 s3, v1", "s_cbranch_scc1 L_A", "s_nop 1"]
    st = {}
    b = nostore(add_prio(dedup_m0(gen_B("full"))))
    hwB = allocate(b, NV - 1)
    if int(E("NOB", "0")):
        b = stamp(0) + [raw("@@EARLY")] + stamp_out()
        allocate(b, 256)
    fb = finalize(b, st, EAG)
    print("B: vgprs", hwB, st, file=sys.stderr)
    h, cx = gen_A_head()
    mark = _st[0]
    lo = gen_A_conv(cx, 0)
    _st[0] = mark
    hi = gen_A_conv(cx, 1)
    h, lo, hi = add_prio(h, int(E("SEGH", "32"))), add_prio(lo), add_prio(hi)
    lo, hi = nostore(lo), nostore(hi)
    inh = {vr.id: vr for x in h for vr, _ in x.wv + x.rv}
    sp = [x for x in h if x.op == "@@SPLIT"][0]
    sp.rv = [(vr, k) for vr in {vr.id: vr for x in lo + hi for vr, _ in x.wv + x.rv if vr.id in inh}.values() for k in range(vr.size)]
    h = [x for x in h if x is not sp] + [sp]
    hwA = allocate(h + lo, NV - 1)
    keep, sp.rv = sp.rv, []
    fh = finalize(h + lo, st, EAG)
    print("A: vgprs", hwA, "head+lo", st, file=sys.stderr)
    for vr in inh.values():
        vr.fixed = True
    hwA = max(hwA, allocate(h + hi, NV - 1))
    fh2 = finalize(h + hi, st, EAG)
    k = fh.index("@@SPLIT")
    assert fh[:k] == fh2[:k] and fh2[k] == "@@SPLIT"
    fa = fh[:k] + ["s_cmp_eq_u32 s31, 1", "s_cbranch_scc1 L_Ahi"] + fh[k + 1:] + ["s_endpgm", "L_Ahi:"] + fh2[k + 1:]
    if int(E("NOA", "0")):
        x = stamp(0) + [raw("@@EARLY")] + stamp_out()
        allocate(x, 256)
        fa = finalize(x)
    fp = []
    if NP:
        p = stamp(0) + gen_P() + ([salu("s_mov_b64", "exec", -1)] + stamp_out() if STAMP else [])
        allocate(p, 256, reserved=[1, 4])
        fp = finalize(p)
    kb, ka = fb.index("@@EARLY"), fa.index("@@EARLY")
    L += fb[:kb] + ["s_branch L_B2", "L_A:"] + fa[:ka] + ["s_branch L_A2", "L_P:"] + fp + ["s_endpgm"]
    pad = lambda n: [".p2align 6"] + ["s_nop 0"] * n
    L += pad(int(E("PADB", "0"))) + ["L_B2:"] + align8(fb[kb + 1:], int(E("PADB", "0"))) + ["s_endpgm"]
    L += pad(int(E("PADA", "0"))) + ["L_A2:"] + align8(fa[ka + 1:], int(E("PADA", "0"))) + ["s_endpgm"]
    L = place_calls(L)
    txt = "\n".join(L)
    Flags.tails = [t for t in Flags.tails if f"{t[0]}:" in txt]
    L += ["L_end:", "s_endpgm"] + Flags.tail_code() + ["L_last:"]
    nv = NV
    L += ['.section .rodata,"a"', ".p2align 6", f".amdhsa_kernel {NAME}_kernel", f"  .amdhsa_next_free_vgpr {nv}",
          f"  .amdhsa_next_free_sgpr {102 if STAMP else 66}", f"  .amdhsa_accum_offset {nv}", "  .amdhsa_group_segment_fixed_size 0",
          "  .amdhsa_kernarg_size 144", "  .amdhsa_user_sgpr_count 2", "  .amdhsa_user_sgpr_kernarg_segment_ptr 1",
          "  .amdhsa_system_sgpr_workgroup_id_x 1", ".end_amdhsa_kernel", ""]
    return "\n".join(L)


if __name__ == "__main__":
    out = sys.argv[1] if len(sys.argv) > 1 else "cdna_kernels/" + NAME + ".s"
    open(out, "w").write(build())
```
